```python
import torch

def _softmax(x, axis=-1):
    return torch.softmax(x, dim=axis)
def _gelu(x):
    return torch.nn.functional.gelu(x, approximate="tanh")
def _silu(x):
    return torch.nn.functional.silu(x)
def _sigmoid(x):
    return torch.sigmoid(x)
def _layernorm(x, axis=-1, eps=1e-5):
    m = x.mean(dim=axis, keepdim=True)
    v = x.var(dim=axis, keepdim=True, unbiased=False)
    return (x - m) / torch.sqrt(v + eps)
def _scatter_add(tgt, idx, src, axis=0):
    return tgt.clone().index_add_(axis, idx, src)
def _segment_sum(src, seg, n):
    out = torch.zeros((n,) + src.shape[1:], dtype=src.dtype)
    return out.index_add_(0, seg, src)
def _pad(x, pw):
    flat = tuple(v for pair in reversed(pw) for v in pair)
    return torch.nn.functional.pad(x, flat)

kernel_name = 'recurrent_scan__sliding_block_cached__glu_gated_swiglu__decode'

def setup_inputs():

    _w = (lambda a: (lambda t: t.to(torch.bfloat16) if t.is_floating_point() else t)(torch.as_tensor(a)))
    def _A_setup():
        B, Sq, D = 1, 1, 576
        Hq, Hkv, Sk, Dh = 32, 16, 65536, 128
        assert Hq % Hkv == 0, (Hq, Hkv)
        return {
            "x": _w((lambda *s: torch.randn(*s, dtype=torch.bfloat16) * 0.05)(B, Sq, D)),
            "k_cache": _w((lambda *s: torch.randn(*s, dtype=torch.bfloat16) * 3.2)(B, Hkv, Sk, Dh)),
            "v_cache": _w((lambda *s: torch.randn(*s, dtype=torch.bfloat16) * 3.2)(B, Hkv, Sk, Dh)),
            "wq": _w((lambda *s: torch.randn(*s, dtype=torch.bfloat16) * 3.2)(D, Hq * Dh) * (D ** -0.5)),
            "wo": _w((lambda *s: torch.randn(*s, dtype=torch.bfloat16) * 3.2)(Hq * Dh, D) * ((Hq * Dh) ** -0.5)),
        }
    _A_in = _A_setup()

    def _B_setup():
        B, S, D, F = 1, 1, 576, 4608
        return {
            "x": _w((lambda *s: torch.randn(*s, dtype=torch.bfloat16) * 0.05)(B, S, D)),
            "w1": _w((lambda *s: torch.randn(*s, dtype=torch.bfloat16) * 0.4)(D, F) * (2.0 / D) ** 0.5),
            "w3": _w((lambda *s: torch.randn(*s, dtype=torch.bfloat16) * 0.4)(D, F) * (2.0 / D) ** 0.5),
            "w2": _w((lambda *s: torch.randn(*s, dtype=torch.bfloat16) * 0.4)(F, D) * (2.0 / F) ** 0.5),
        }
    _B_in = _B_setup()

    return {
        "A_x": _A_in["x"],
        "A_k_cache": _A_in["k_cache"],
        "A_v_cache": _A_in["v_cache"],
        "A_wq": _A_in["wq"],
        "A_wo": _A_in["wo"],
        "B_x": _B_in["x"],
        "B_w1": _B_in["w1"],
        "B_w3": _B_in["w3"],
        "B_w2": _B_in["w2"],
    }

def reference(A_x, A_k_cache, A_v_cache, A_wq, A_wo, B_x, B_w1, B_w3, B_w2):
    def _A_ref(x, k_cache, v_cache, wq, wo):
        B, Sq, D = x.shape
        Hq, Dh = 32, 128
        Hkv, Sk = k_cache.shape[1], k_cache.shape[2]
        W = min(4096, max(256, Sk // 4))
        rep = Hq // Hkv
        q = (lambda x, *d: x.permute(*d))((x @ wq).reshape(B, Sq, Hq, Dh), 0, 2, 1, 3)
        k = (lambda x, n, axis: torch.repeat_interleave(x, n, dim=axis))(k_cache[:, :, Sk - W:, :], rep, axis=1)
        v = (lambda x, n, axis: torch.repeat_interleave(x, n, dim=axis))(v_cache[:, :, Sk - W:, :], rep, axis=1)
        scores = torch.einsum("bhqd,bhkd->bhqk", q, k) * (Dh ** -0.5)
        p = _softmax(scores, axis=-1)
        o = torch.einsum("bhqk,bhkd->bhqd", p, v)
        return (lambda x, *d: x.permute(*d))(o, 0, 2, 1, 3).reshape(B, Sq, Hq * Dh) @ wo

    def _B_ref(x, w1, w3, w2):
        gate = torch.einsum("bsd,df->bsf", x, w1)
        up = torch.einsum("bsd,df->bsf", x, w3)
        h = _silu(gate) * up
        out = torch.einsum("bsf,fd->bsd", h, w2)
        return out

    x = A_x
    xn = _layernorm(x, axis=-1)
    s = _A_ref(xn, A_k_cache, A_v_cache, A_wq, A_wo)
    g = _silu(_B_ref(xn, B_w1, B_w3, B_w2))
    return x + s * g
```

```python
NAME = "recurrent_scan__sliding_block_cached__glu_gated_swiglu__decode"
class Asm:
    def __init__(self):
        self.lines = []
        self.lab = 0
    def __call__(self, s=""):
        for l in s.split("\n"):
            self.lines.append("    " + l.strip() if l.strip() and not l.strip().endswith(":") else l.strip())
    def label(self, base="L"):
        self.lab += 1
        return f"{base}_{self.lab}"
    def text(self):
        return "\n".join(self.lines) + "\n"

HEADER_COMMENT = """; Kernarg layout (96 bytes, ptrs only, base s[0:1]):
"""
def wrap(body, grid, block, lds, vgpr, sgpr=102, accum=None, name=None, extra_desc=""):
    name = name or NAME + "_kernel"
    if accum is None:
        accum = min(256, (vgpr + 3) // 4 * 4)
    return f"""{HEADER_COMMENT}; @launch grid=({grid},1,1) block=({block},1,1) lds={lds}
.amdgcn_target "amdgcn-amd-amdhsa--gfx950"
.text
.globl {name}
.p2align 8
.type {name},@function
{name}:
{body}
.section .rodata,"a"
.p2align 6
.amdhsa_kernel {name}
  .amdhsa_next_free_vgpr {vgpr}
  .amdhsa_next_free_sgpr {sgpr}
  .amdhsa_accum_offset {accum}
  .amdhsa_group_segment_fixed_size 0
  .amdhsa_kernarg_size 96
  .amdhsa_user_sgpr_count 2
  .amdhsa_user_sgpr_kernarg_segment_ptr 1
  .amdhsa_system_sgpr_workgroup_id_x 1
{extra_desc}.end_amdhsa_kernel
"""
```

```python
import sys
from asmlib import *

QBUF = 0
STAT = 65536
OBUF = STAT + 4096
FBUF = OBUF + 262144
SBUF = FBUF + 294912
CLR_SHARE = 4608
WS_SIZE = STAT + 256 * CLR_SHARE
assert SBUF + 36 * 16384 <= WS_SIZE
L_K = 0
L_XN = 65536
L_Q = L_XN + 2304
L_OP = L_Q + 512
L_FIN = L_OP + 4096
L_ST = L_FIN + 1024
L_FAC = L_ST + 64
L_FL = L_FAC + 32
FL_XN, FL_CLR, FL_ALL, FL_Q, CNT_ST, CNT_PV, CNT_O, CNT_FIN = [4 * i for i in range(8)]
LDS_SIZE = L_FL + 64
LOG2E = 0x3fb8aa3b
SCALE = 0x3db504f3
INV576 = 0x3ae38e39
EPS = 0x3727c5ac
DPP = "row_mask:0xf bank_mask:0xf"
NWAVES = 13

class K:
    def __init__(self, ts=False, hmap="b16", rot=True, ldsspin=200000, gspin=20000, pref=True):
        self.a = Asm(); self.ts = ts; self.hmap = hmap; self.rot = rot
        self.ldsspin = ldsspin; self.gspin = gspin; self.pref = pref
    def stamp(self, i):
        if self.ts:
            self.a(f"s_memrealtime s[{80+2*i}:{81+2*i}]")
    def srd(self, d, p, n):
        a = self.a
        a(f"s_mov_b32 s{d}, s{p}"); a(f"s_mov_b32 s{d+1}, s{p+1}"); a(f"s_mov_b32 s{d+2}, {n}"); a(f"s_mov_b32 s{d+3}, 0x20000")
    def spin_lds(self, off, val, vt, vb):
        a = self.a
        l = a.label("L_sp"); d = a.label("L_spd")
        a(f"s_mov_b32 s78, {self.ldsspin}")
        a(f"{l}:")
        a(f"ds_read_b32 v{vt}, v{vb} offset:{off}")
        a("s_waitcnt lgkmcnt(0)")
        a(f"v_readfirstlane_b32 s79, v{vt}")
        a(f"s_cmp_ge_u32 s79, {val}")
        a(f"s_cbranch_scc1 {d}")
        a("s_sleep 1")
        a("s_sub_u32 s78, s78, 1")
        a(f"s_cbranch_scc0 {l}")
        a(f"{d}:")
    def set_flag(self, off, vt, vb):
        a = self.a
        a(f"v_mov_b32 v{vt}, 1")
        a(f"ds_write_b32 v{vb}, v{vt} offset:{off}")
    def arrive(self, off, vt, vb):
        a = self.a
        a(f"v_mov_b32 v{vt}, 1")
        a("s_mov_b64 exec, 1")
        a(f"ds_add_rtn_u32 v{vt}, v{vb}, v{vt} offset:{off}")
        a("s_mov_b64 exec, -1")
        a("s_waitcnt lgkmcnt(0)")
        a(f"v_readfirstlane_b32 s79, v{vt}")
    def masks(self, m, t0, t1):
        a = self.a
        a(f"v_and_b32 v{t0}, 1, v1")
        a(f"v_lshlrev_b32 v{t0}, 4, v{t0}")
        a(f"v_mov_b32 v{t1}, 0xffff")
        a(f"v_lshlrev_b32 v{t0}, v{t0}, v{t1}")
        a(f"v_lshrrev_b32 v{t1}, 1, v1")
        for j in range(4):
            a(f"v_cmp_eq_u32 vcc, {j}, v{t1}")
            a("s_nop 1")
            a(f"v_cndmask_b32 v{m+j}, 0, v{t0}, vcc")
    def build(self, op, src, m):
        for j in range(4):
            self.a(f"v_and_b32 v{op+j}, v{src}, v{m+j}")
    def fold(self, d, u):
        a = self.a
        for r in range(4):
            a(f"v_permlane32_swap_b32 v{d+r}, v{u+r}")
        for r in range(4):
            a(f"v_add_f32_dpp v{d+r}, v{u+r}, v{d+r} row_ror:8 {DPP}")
    def red8(self, regs, op="add"):
        a = self.a
        for pat in ("quad_perm:[1,0,3,2]", "quad_perm:[2,3,0,1]", "row_half_mirror"):
            if len(regs) < 3: a(f"s_nop {2 - len(regs)}")
            for r in regs:
                a(f"v_{op}_f32_dpp v{r}, v{r}, v{r} {pat} {DPP}")
    def redrows(self, r, t, op="add"):
        a = self.a
        for sw in ("v_permlane16_swap_b32", "v_permlane32_swap_b32"):
            a(f"v_mov_b32 v{t}, v{r}")
            a("s_nop 1")
            a(f"{sw} v{r}, v{t}")
            a("s_nop 1")
            a(f"v_{op}_f32 v{r}, v{r}, v{t}")
    def allred(self, r, t, op="add"):
        a = self.a
        a("s_nop 1")
        self.red8([r], op)
        a("s_nop 1")
        a(f"v_{op}_f32_dpp v{r}, v{r}, v{r} row_mirror {DPP}")
        self.redrows(r, t, op)
    def bfr(self, d, s):
        self.a(f"v_cvt_pk_bf16_f32 v{d}, v{s}, v{s}")
        self.a(f"v_and_b32 v{d}, 0xffff0000, v{d}")
    def bfr2(self, d0, d1, s0, s1):
        a = self.a
        a(f"v_cvt_pk_bf16_f32 v{d1}, v{s0}, v{s1}")
        a(f"v_lshlrev_b32 v{d0}, 16, v{d1}")
        a(f"v_and_b32 v{d1}, 0xffff0000, v{d1}")
    def sentinel_check(self, regs, t, retry, done=None):
        a = self.a
        regs = list(regs)
        first = True
        while regs:
            if first:
                if len(regs) >= 3:
                    a(f"v_max3_u32 v{t}, v{regs[0]}, v{regs[1]}, v{regs[2]}"); regs = regs[3:]
                else:
                    a(f"v_max_u32 v{t}, v{regs[0]}, v{regs[-1]}"); regs = []
                first = False
            elif len(regs) >= 2:
                a(f"v_max3_u32 v{t}, v{t}, v{regs[0]}, v{regs[1]}"); regs = regs[2:]
            else:
                a(f"v_max_u32 v{t}, v{t}, v{regs[0]}"); regs = []
        a(f"v_cmp_eq_u32 vcc, -1, v{t}")
        a("s_sub_u32 s77, s77, 1")
        ok = a.label("L_ok")
        a(f"s_cbranch_scc1 {ok}")
        a(f"s_cbranch_vccnz {retry}")
        a(f"{ok}:")
    def finish(self):
        a = self.a
        if self.ts:
            a("s_branch L_ts")
        else:
            a("s_endpgm")

    def gen(self):
        a = self.a
        if self.ts:
            for i in range(1, 8):
                a(f"s_mov_b64 s[{80+2*i}:{81+2*i}], 0")
        self.stamp(0)
        a("s_cmp_ge_u32 s2, 256")
        a("s_cbranch_scc1 L_end")
        a("s_load_dwordx16 s[4:19], s[0:1], 0")
        a("s_load_dwordx8 s[20:27], s[0:1], 64")
        a("v_lshrrev_b32 v1, 6, v0")
        a("v_and_b32 v0, 63, v0")
        a("v_readfirstlane_b32 s3, v1")
        if self.hmap == "b16":
            a("s_lshr_b32 s28, s2, 4"); a("s_and_b32 s29, s2, 15")
        else:
            a("s_and_b32 s28, s2, 7"); a("s_lshl_b32 s28, s28, 1"); a("s_lshr_b32 s29, s2, 3"); a("s_and_b32 s30, s29, 1")
            a("s_add_u32 s28, s28, s30"); a("s_lshr_b32 s29, s29, 1")
        a("v_and_b32 v1, 7, v0")
        a("v_lshrrev_b32 v2, 3, v0")
        a(f"v_mov_b32 v3, {L_FL}")
        a("s_and_b32 s30, s29, 7")
        a("s_lshl_b32 s31, s28, 3"); a("s_add_u32 s31, s31, s30")
        a("s_cmp_ge_u32 s3, 10"); a("s_cbranch_scc1 L_roleO")
        a("s_cmp_ge_u32 s3, 5"); a("s_cbranch_scc1 L_roleF")
        a("s_cmp_ge_u32 s3, 1"); a("s_cbranch_scc1 L_roleA")
        self.roleQ()
        a("L_roleA:"); self.roleA()
        a("L_roleF:"); self.roleF()
        a("L_roleO:"); self.roleO()
        if self.ts:
            a("L_ts:")
            a("s_waitcnt lgkmcnt(0)")
            a("s_mov_b32 s56, s26"); a("s_mov_b32 s57, s27"); a("s_mov_b32 s58, 0x40000000"); a("s_mov_b32 s59, 0x20000")
            a("s_lshl_b32 s76, s2, 4"); a("s_add_u32 s76, s76, s3"); a("s_lshl_b32 s76, s76, 6"); a("s_add_u32 s76, s76, 0x10000000")
            a("s_mov_b64 exec, 1")
            a("v_mov_b32 v2, 0")
            for i in range(8):
                a(f"v_mov_b32 v4, s{80+2*i}"); a(f"v_mov_b32 v5, s{81+2*i}")
                a(f"buffer_store_dwordx2 v[4:5], v2, s[56:59], s76 offen offset:{i*8}")
                a("s_nop 1")
        a("L_end:")
        a("s_endpgm")
        return wrap(a.text(), 256, 64 * NWAVES, LDS_SIZE, 128, extra_desc="  .amdhsa_float_denorm_mode_32 3\n")

    def roleQ(self):
        a = self.a
        W = 56
        a("s_setprio 3")
        a("v_lshlrev_b32 v4, 4, v0")
        a("v_lshlrev_b32 v5, 2, v0")
        a("v_lshlrev_b32 v6, 13, v2")
        a("v_lshl_add_u32 v6, v1, 4, v6")
        a("s_add_u32 s41, s29, s28"); a("s_and_b32 s41, s41, 3")
        a("s_lshr_b32 s42, s29, 2")
        a(f"s_mul_i32 s40, s42, {144*8192}")
        a("s_lshl_b32 s43, s28, 9"); a("s_add_u32 s40, s40, s43")
        a("s_lshl_b32 s43, s41, 7"); a("s_add_u32 s40, s40, s43")
        a("s_mov_b32 s34, 1152"); a("s_mov_b32 s35, 0x20000")
        a(f"s_mov_b32 s38, {576*4096*2}"); a("s_mov_b32 s39, 0x20000")
        a("s_waitcnt lgkmcnt(0)")
        a("s_mov_b64 s[32:33], s[4:5]")
        a("s_mov_b64 s[36:37], s[10:11]")
        a("buffer_load_dwordx4 v[8:11], v4, s[32:35], 0 offen")
        a("buffer_load_dword v12, v5, s[32:35], 0 offen offset:1024")
        for t in range(18):
            a(f"buffer_load_dwordx4 v[{W+4*t}:{W+4*t+3}], v6, s[36:39], s40 offen nt")
            if t < 17: a("s_add_u32 s40, s40, 65536")
        a("v_mov_b32 v14, 0"); a("v_mov_b32 v15, 0"); a("v_mov_b32 v16, 0"); a("v_mov_b32 v17, 0")
        a("ds_write_b128 v3, v[14:17]")
        a("ds_write_b128 v3, v[14:17] offset:16")
        a("s_waitcnt lgkmcnt(0)")
        a("s_barrier")
        self.stamp(1)
        self.srd(44, 26, WS_SIZE)
        M = 48
        self.masks(M, 52, 53)
        a("s_waitcnt vmcnt(18)")
        F = 14
        for i in range(5):
            a(f"v_lshlrev_b32 v{F+2*i}, 16, v{8+i}")
            a(f"v_and_b32 v{F+2*i+1}, 0xffff0000, v{8+i}")
        a(f"v_add_f32 v24, v{F}, v{F+1}")
        for i in range(2, 10):
            a(f"v_add_f32 v24, v24, v{F+i}")
        self.allred(24, 25)
        a(f"v_mul_f32 v24, {INV576:#x}, v24")
        a(f"v_sub_f32 v26, v{F}, v24")
        a("v_mul_f32 v25, v26, v26")
        for i in range(1, 8):
            a(f"v_sub_f32 v26, v{F+i}, v24")
            a("v_fmac_f32 v25, v26, v26")
        a("s_mov_b32 exec_hi, 0")
        for i in range(8, 10):
            a(f"v_sub_f32 v26, v{F+i}, v24")
            a("v_fmac_f32 v25, v26, v26")
        a("s_mov_b32 exec_hi, -1")
        self.allred(25, 26)
        a(f"v_mul_f32 v25, {INV576:#x}, v25")
        self.bfr2(24, 25, 24, 25)
        a(f"v_add_f32 v25, {EPS:#x}, v25")
        self.bfr(25, 25)
        a("v_sqrt_f32 v25, v25")
        a("s_nop 0")
        self.bfr(25, 25)
        a("v_rcp_f32 v26, v25")
        for i in range(10):
            a(f"v_sub_f32 v{F+i}, v{F+i}, v24")
        for i in range(0, 10, 2):
            self.bfr2(F+i, F+i+1, F+i, F+i+1)
        for i in range(10):
            a(f"v_mul_f32 v27, v{F+i}, v26")
            a(f"v_fma_f32 v{F+i}, -v27, v25, v{F+i}")
            a(f"v_fma_f32 v27, v{F+i}, v26, v27")
            a(f"v_cvt_pk_bf16_f32 v{28+i}, v27, v27")
        a("v_lshlrev_b32 v4, 5, v0")
        a(f"v_add_u32 v4, {L_XN}, v4")
        a("ds_write_b128 v4, v[28:31]")
        a("ds_write_b128 v4, v[32:35] offset:16")
        a("v_lshlrev_b32 v4, 3, v0")
        a(f"v_add_u32 v4, {L_XN + 2048}, v4")
        a("s_mov_b32 exec_hi, 0")
        a("ds_write_b64 v4, v[36:37]")
        a("s_mov_b32 exec_hi, -1")
        self.set_flag(FL_XN, 5, 3)
        a("s_mul_i32 s43, s42, 576"); a(f"s_add_u32 s43, s43, {L_XN}")
        a("v_lshl_add_u32 v4, v2, 2, s43")
        MU = 8
        for t in range(0, 18, 2):
            a(f"ds_read2_b32 v[{MU+t}:{MU+t+1}], v4 offset0:{8*t} offset1:{8*t+8}")
        a("s_waitcnt lgkmcnt(0)")
        self.stamp(2)
        OP = [28, 32]; D = 36; U = 40
        self.build(OP[0], MU, M)
        for t in range(18):
            if t < 17: self.build(OP[(t+1) & 1], MU + t + 1, M)
            else: a("s_nop 0")
            a(f"s_waitcnt vmcnt({17-t})")
            o = OP[t & 1]
            a(f"v_mfma_f32_16x16x32_bf16 v[{D}:{D+3}], v[{o}:{o+3}], v[{W+4*t}:{W+4*t+3}], {'0' if t == 0 else f'v[{D}:{D+3}]'}")
        a("v_lshlrev_b32 v4, 5, v1")
        a("v_and_b32 v5, 16, v0")
        a("v_add_u32 v4, v4, v5")
        a("s_lshl_b32 s40, s28, 12"); a("s_lshl_b32 s43, s42, 10"); a("s_add_u32 s43, s43, s40")
        a("s_lshl_b32 s41, s41, 8"); a("s_add_u32 s43, s43, s41")
        self.spin_lds(FL_CLR, 1, 5, 3)
        self.fold(D, U)
        a("s_mov_b64 exec, 0x00ff00ff")
        a(f"buffer_store_dwordx4 v[{D}:{D+3}], v4, s[44:47], s43 offen sc1")
        a("s_mov_b64 exec, -1")
        self.stamp(3)
        self.spin_lds(FL_ALL, 1, 5, 3)
        self.stamp(4)
        a("v_lshlrev_b32 v4, 4, v0")
        a(f"s_mov_b32 s77, {self.gspin}")
        a("L_qpoll:")
        for r in range(4):
            a(f"buffer_load_dwordx4 v[{8+4*r}:{11+4*r}], v4, s[44:47], s40 offen offset:{1024*r} sc1")
        a("s_waitcnt vmcnt(0)")
        self.sentinel_check(range(8, 24), 5, "L_qpoll")
        for i in range(4):
            a(f"v_add_f32 v{8+i}, v{8+i}, v{12+i}")
            a(f"v_add_f32 v{16+i}, v{16+i}, v{20+i}")
        for i in range(4):
            a(f"v_add_f32 v{8+i}, v{8+i}, v{16+i}")
        a("v_cvt_pk_bf16_f32 v12, v8, v9")
        a("v_cvt_pk_bf16_f32 v13, v10, v11")
        a("v_lshlrev_b32 v4, 3, v0")
        a(f"v_add_u32 v4, {L_Q}, v4")
        a("ds_write_b64 v4, v[12:13]")
        self.set_flag(FL_Q, 5, 3)
        self.stamp(5)
        self.finish()

    def roleA(self):
        a = self.a
        V = 64; QF = 16; KF = 32; S = 48
        a("s_setprio 2")
        a("s_sub_u32 s40, s3, 1")
        a("v_lshrrev_b32 v4, 4, v0")
        a("v_and_b32 v5, 15, v0")
        a("v_xor_b32 v6, v4, v5")
        a("v_lshlrev_b32 v6, 4, v6")
        a("v_lshl_add_u32 v8, v4, 8, v6")
        for t in range(1, 4):
            a(f"v_xor_b32 v{8+t}, {t<<6}, v8")
        a("v_lshlrev_b32 v7, 4, v5")
        a("v_lshl_add_u32 v7, v4, 10, v7")
        a("s_lshl_b32 s41, s28, 24"); a("s_lshl_b32 s42, s29, 16"); a("s_add_u32 s41, s41, s42")
        a("s_lshl_b32 s42, s40, 14"); a("s_add_u32 s41, s41, s42"); a(f"s_add_u32 s41, s41, {61440*256}")
        for T in range(4):
            if self.rot:
                a(f"s_add_u32 s43, s29, s40"); a(f"s_add_u32 s43, s43, {T}"); a("s_and_b32 s43, s43, 3"); a("s_lshl_b32 s43, s43, 12")
                a(f"s_add_u32 s{44+T}, s41, s43")
            else:
                a(f"s_add_u32 s{44+T}, s41, {T*4096}")
        a("s_mov_b32 s34, 0x10000000"); a("s_mov_b32 s35, 0x20000"); a("s_mov_b32 s38, 0x10000000"); a("s_mov_b32 s39, 0x20000")
        a("s_waitcnt lgkmcnt(0)")
        a("s_mov_b64 s[32:33], s[6:7]")
        a("s_mov_b64 s[36:37], s[8:9]")
        a("s_mov_b32 m0, s42")
        a("s_barrier")
        for T in range(4):
            for t in range(4):
                a(f"buffer_load_dwordx4 v{8+t}, s[32:35], s{44+T} offen offset:{1024*t} nt lds")
            if T < 3:
                a("s_add_u32 m0, m0, 4096")
                a("s_nop 0")
        self.stamp(1)
        for T in range(4):
            for r in range(4):
                i = 4 * T + r
                a(f"buffer_load_dwordx4 v[{V+4*i}:{V+4*i+3}], v7, s[36:39], s{44+T} offen offset:{256*r} nt")
        self.stamp(2)
        self.srd(48, 26, WS_SIZE)
        a("v_lshl_add_u32 v8, v5, 8, v6")
        a("v_add_u32 v8, s42, v8")
        for c in range(1, 4):
            a(f"v_xor_b32 v{8+c}, {c<<6}, v8")
        a("v_lshrrev_b32 v12, 3, v5")
        a("v_lshlrev_b32 v13, 8, v12")
        a("v_lshl_add_u32 v13, v4, 4, v13")
        a(f"v_add_u32 v13, {L_Q}, v13")
        self.spin_lds(FL_Q, 1, 14, 3)
        self.stamp(3)
        for c in range(4):
            a(f"ds_read_b128 v[{QF+4*c}:{QF+4*c+3}], v13 offset:{64*c}")
        a("s_waitcnt vmcnt(16)")
        for c in range(4):
            a(f"ds_read_b128 v[{KF+4*c}:{KF+4*c+3}], v{8+c}")
        for T in range(4):
            for c in range(4):
                a(f"s_waitcnt lgkmcnt({3 if T < 3 else 3 - c})")
                a(f"v_mfma_f32_16x16x32_bf16 v[{S+4*T}:{S+4*T+3}], v[{KF+4*c}:{KF+4*c+3}], v[{QF+4*c}:{QF+4*c+3}], {'0' if c == 0 else f'v[{S+4*T}:{S+4*T+3}]'}")
                if T < 3:
                    a(f"ds_read_b128 v[{KF+4*c}:{KF+4*c+3}], v{8+c} offset:{4096*(T+1)}")
        M = 16
        self.masks(M, 20, 21)
        a(f"s_mov_b32 s43, {SCALE:#x}")
        for i in range(0, 16, 2):
            self.bfr2(S+i, S+i+1, S+i, S+i+1)
        for i in range(16):
            a(f"v_mul_f32 v{S+i}, s43, v{S+i}")
        for i in range(0, 16, 2):
            self.bfr2(S+i, S+i+1, S+i, S+i+1)
        a(f"v_max3_f32 v22, v{S}, v{S+1}, v{S+2}")
        for i in range(3, 15, 2):
            a(f"v_max3_f32 v22, v22, v{S+i}, v{S+i+1}")
        a(f"v_max_f32 v22, v22, v{S+15}")
        self.redrows(22, 24, "max")
        a(f"s_mov_b32 s43, {LOG2E:#x}")
        for i in range(16):
            a(f"v_sub_f32 v{S+i}, v{S+i}, v22")
        for i in range(16):
            a(f"v_mul_f32 v{S+i}, s43, v{S+i}")
        for i in range(16):
            a(f"v_exp_f32 v{S+i}, v{S+i}")
        a(f"v_add_f32 v23, v{S}, v{S+1}")
        for i in range(2, 16):
            a(f"v_add_f32 v23, v23, v{S+i}")
        self.redrows(23, 24, "add")
        for i in range(16):
            a(f"v_cvt_pk_bf16_f32 v{S+i}, v{S+i}, v{S+i}")
        a("v_lshlrev_b32 v13, 3, v12")
        a(f"v_add_u32 v13, {L_ST}, v13")
        a("s_lshl_b32 s52, s40, 4")
        a("v_add_u32 v14, s52, v13")
        a("s_mov_b64 exec, 0x101")
        a("ds_write_b64 v14, v[22:23]")
        a("s_mov_b64 exec, -1")
        self.arrive(CNT_ST, 9, 3)
        a("s_lshl_b32 s53, s28, 4"); a("s_add_u32 s53, s53, s29")
        a("s_cmp_lg_u32 s79, 3")
        a("s_cbranch_scc1 L_nostat")
        for w in range(4):
            a(f"ds_read_b64 v[{24+2*w}:{25+2*w}], v13 offset:{16*w}")
        a("s_waitcnt lgkmcnt(0)")
        a("v_max3_f32 v22, v24, v26, v28")
        a("v_max_f32 v22, v22, v30")
        for w in range(4):
            a(f"v_sub_f32 v{32+w}, v{24+2*w}, v22")
        for w in range(4):
            a(f"v_mul_f32 v{32+w}, s43, v{32+w}")
        for w in range(4):
            a(f"v_exp_f32 v{32+w}, v{32+w}")
        a("v_mul_f32 v23, v32, v25")
        for w in range(1, 4):
            a(f"v_fmac_f32 v23, v{32+w}, v{25+2*w}")
        a("v_lshlrev_b32 v14, 4, v12")
        a(f"v_add_u32 v14, {L_FAC}, v14")
        a("v_lshlrev_b32 v15, 3, v12")
        a("s_lshl_b32 s54, s53, 4"); a(f"s_add_u32 s54, s54, {STAT}")
        a("s_mov_b64 exec, 0x101")
        a("ds_write_b128 v14, v[32:35]")
        a("buffer_store_dwordx2 v[22:23], v15, s[48:51], s54 offen sc1")
        a("s_mov_b64 exec, -1")
        a("L_nostat:")
        self.stamp(4)
        OP = [36, 40]; D = 44
        self.build(OP[0], S, M)
        for i in range(16):
            if i < 15: self.build(OP[(i+1) & 1], S + i + 1, M)
            else: a("s_nop 0")
            a(f"s_waitcnt vmcnt({15-i})")
            o = OP[i & 1]
            a(f"v_mfma_f32_16x16x32_bf16 v[{D}:{D+3}], v[{o}:{o+3}], v[{V+4*i}:{V+4*i+3}], {'0' if i == 0 else f'v[{D}:{D+3}]'}")
        a("v_lshlrev_b32 v13, 4, v0")
        a(f"v_add_u32 v13, {L_OP}, v13")
        a("s_lshl_b32 s52, s40, 10")
        a("v_add_u32 v14, s52, v13")
        a("v_lshrrev_b32 v15, 5, v0")
        a("v_lshlrev_b32 v12, 9, v15")
        a("v_lshlrev_b32 v15, 4, v15")
        a(f"v_add_u32 v15, {L_FAC}, v15")
        a("s_nop 0")
        a(f"ds_write_b128 v14, v[{D}:{D+3}]")
        self.arrive(CNT_PV, 9, 3)
        a("s_cmp_lg_u32 s79, 3")
        a("s_cbranch_scc1 L_nopub")
        a("ds_read_b128 v[16:19], v15")
        for w in range(4):
            a(f"ds_read_b128 v[{20+4*w}:{23+4*w}], v13 offset:{1024*w}")
        a("v_lshl_add_u32 v12, v5, 5, v12")
        a("v_and_b32 v14, 16, v0")
        a("v_add_u32 v12, v12, v14")
        a("s_lshl_b32 s54, s53, 10"); a(f"s_add_u32 s54, s54, {OBUF}")
        a("s_waitcnt lgkmcnt(3)")
        for r in range(4):
            a(f"v_mul_f32 v{36+r}, v16, v{20+r}")
        for w in range(1, 4):
            a(f"s_waitcnt lgkmcnt({3-w})")
            for r in range(4):
                a(f"v_fmac_f32 v{36+r}, v{16+w}, v{20+4*w+r}")
        a("buffer_store_dwordx4 v[36:39], v12, s[48:51], s54 offen sc1")
        a("L_nopub:")
        self.stamp(5)
        a("s_cmp_lt_u32 s29, 8")
        a("s_cbranch_scc1 L_Adone")
        if self.hmap == "b16":
            a("s_mov_b32 s55, s31")
        else:
            a("s_lshl_b32 s55, s30, 4"); a("s_add_u32 s55, s55, s28")
        a("s_cmp_ge_u32 s55, 36")
        a("s_cbranch_scc1 L_Adone")
        self.srd(32, 4, 1152)
        self.srd(36, 22, 1152)
        a("v_lshlrev_b32 v9, 1, v5")
        a("s_lshl_b32 s56, s55, 5")
        a("buffer_load_ushort v10, v9, s[32:35], s56 offen")
        a("v_lshlrev_b32 v8, 4, v0")
        a("s_lshl_b32 s57, s55, 14"); a("s_lshl_b32 s58, s40, 12"); a("s_add_u32 s57, s57, s58"); a(f"s_add_u32 s57, s57, {SBUF}")
        a("v_and_b32 v11, 3, v0")
        a("v_lshlrev_b32 v11, 4, v11")
        a("v_lshl_add_u32 v11, v4, 6, v11")
        a("s_lshl_b32 s58, s40, 8"); a(f"s_add_u32 s58, s58, {L_FIN}")
        a("v_add_u32 v11, s58, v11")
        a("v_and_b32 v12, 1, v4")
        a("v_lshlrev_b32 v12, 9, v12")
        a("v_lshl_add_u32 v12, v5, 2, v12")
        a(f"v_add_u32 v12, {L_FIN}, v12")
        self.spin_lds(CNT_O, 3, 14, 3)
        a(f"s_mov_b32 s77, {self.gspin}")
        a("L_fpoll:")
        for r in range(4):
            a(f"buffer_load_dwordx4 v[{16+4*r}:{19+4*r}], v8, s[48:51], s57 offen offset:{1024*r} sc1")
        a("s_waitcnt vmcnt(0)")
        self.sentinel_check(range(16, 32), 14, "L_fpoll")
        self.stamp(6)
        for i in range(4):
            a(f"v_add_f32 v{16+i}, v{16+i}, v{20+i}")
            a(f"v_add_f32 v{24+i}, v{24+i}, v{28+i}")
        for i in range(4):
            a(f"v_add_f32 v{16+i}, v{16+i}, v{24+i}")
        for rot in (4, 8):
            for i in range(4):
                a(f"v_add_f32_dpp v{16+i}, v{16+i}, v{16+i} row_ror:{rot} {DPP}")
        a("s_mov_b32 exec_lo, 0x000f000f"); a("s_mov_b32 exec_hi, 0x000f000f")
        a("ds_write_b128 v11, v[16:19]")
        a("s_mov_b64 exec, -1")
        self.arrive(CNT_FIN, 14, 3)
        a("s_cmp_lg_u32 s79, 3")
        a("s_cbranch_scc1 L_Adone")
        for k in range(4):
            a(f"ds_read2_b32 v[{16+2*k}:{17+2*k}], v12 offset0:{32*k} offset1:{32*k+16}")
        a("v_lshlrev_b32 v10, 16, v10")
        a("s_waitcnt lgkmcnt(0)")
        for k in range(4):
            a(f"v_add_f32 v{16+2*k}, v{16+2*k}, v{17+2*k}")
        a("v_add_f32 v16, v16, v18"); a("v_add_f32 v20, v20, v22"); a("v_add_f32 v16, v16, v20")
        self.bfr(16, 16)
        a("v_mov_b32 v17, v16")
        a("s_nop 1")
        a("v_permlane16_swap_b32 v16, v17")
        a("s_nop 1")
        a(f"v_mul_f32 v18, {LOG2E | 0x80000000:#x}, v17")
        a("v_exp_f32 v18, v18")
        a("s_nop 0")
        a("v_add_f32 v18, 1.0, v18")
        a("v_rcp_f32 v18, v18")
        a("s_nop 0")
        a("v_mul_f32 v18, v17, v18")
        self.bfr(18, 18)
        a("v_mul_f32 v18, v16, v18")
        self.bfr(18, 18)
        a("v_add_f32 v18, v10, v18")
        a("v_cvt_pk_bf16_f32 v18, v18, v18")
        a("s_mov_b64 exec, 0xffff")
        a("buffer_store_short v18, v9, s[36:39], s56 offen")
        self.stamp(7)
        a("L_Adone:")
        self.finish()

    def roleF(self):
        a = self.a
        W = 32
        a("s_setprio 1")
        a("s_sub_u32 s40, s3, 5")
        if self.pref:
            lp = a.label("L_nopf")
            a("s_cmp_lg_u32 s40, 0"); a(f"s_cbranch_scc1 {lp}")
            a("s_getpc_b64 s[48:49]")
            a("L_pc:")
            a(f"s_sub_u32 s48, s48, L_pc-{NAME}_kernel"); a("s_subb_u32 s49, s49, 0")
            a("v_lshlrev_b32 v4, 7, v0")
            a(f"v_min_u32 v4, L_end-{NAME}_kernel, v4")
            a("global_load_dword v100, v4, s[48:49]")
            a(f"{lp}:")
        a("s_lshr_b32 s41, s29, 3"); a("s_mul_i32 s41, s41, 5"); a("s_add_u32 s41, s41, s40")
        a("s_mul_i32 s42, s30, 9"); a("s_add_u32 s42, s42, s41")
        a("s_lshr_b32 s43, s28, 1")
        a(f"s_mul_i32 s44, s43, {72*9216}"); a("s_lshl_b32 s45, s42, 7"); a("s_add_u32 s44, s44, s45")
        a("v_mul_u32_u24 v6, 9216, v2")
        a("v_lshl_add_u32 v6, v1, 4, v6")
        a(f"s_mov_b32 s34, {576*4608*2}"); a("s_mov_b32 s35, 0x20000")
        a("s_bitcmp1_b32 s28, 0")
        a("s_waitcnt lgkmcnt(0)")
        a("s_cselect_b64 s[32:33], s[18:19], s[16:17]")
        a("s_barrier")
        a("s_cmp_ge_u32 s41, 9")
        a("s_cbranch_scc1 L_Fdone")
        for t in range(9):
            a(f"buffer_load_dwordx4 v[{W+4*t}:{W+4*t+3}], v6, s[32:35], s44 offen nt")
            if t < 8: a(f"s_add_u32 s44, s44, {8*9216}")
        self.stamp(1)
        a("s_setprio 3")
        self.srd(36, 26, WS_SIZE)
        M = 28
        self.masks(M, 4, 5)
        self.spin_lds(FL_XN, 1, 5, 3)
        a("s_mul_i32 s45, s43, 288"); a(f"s_add_u32 s45, s45, {L_XN}")
        a("v_lshl_add_u32 v4, v2, 2, s45")
        MU = 8
        for t in range(0, 8, 2):
            a(f"ds_read2_b32 v[{MU+t}:{MU+t+1}], v4 offset0:{8*t} offset1:{8*t+8}")
        a(f"ds_read_b32 v{MU+8}, v4 offset:256")
        a("v_lshlrev_b32 v4, 5, v1")
        a("v_and_b32 v5, 16, v0")
        a("v_add_u32 v4, v4, v5")
        a("s_and_b32 s45, s28, 1"); a("s_lshl_b32 s45, s45, 3"); a("s_add_u32 s45, s45, s43"); a("s_mul_i32 s45, s45, 18432")
        a("s_lshl_b32 s46, s42, 8"); a("s_add_u32 s45, s45, s46"); a(f"s_add_u32 s45, s45, {FBUF}")
        self.spin_lds(FL_ALL, 1, 5, 3)
        OP = [20, 24]; D = 68; U = 72
        self.build(OP[0], MU, M)
        for t in range(9):
            if t < 8: self.build(OP[(t+1) & 1], MU + t + 1, M)
            else: a("s_nop 0")
            a(f"s_waitcnt vmcnt({8-t})")
            o = OP[t & 1]
            a(f"v_mfma_f32_16x16x32_bf16 v[{D}:{D+3}], v[{o}:{o+3}], v[{W+4*t}:{W+4*t+3}], {'0' if t == 0 else f'v[{D}:{D+3}]'}")
        self.stamp(2)
        a("s_nop 7")
        self.fold(D, U)
        a("s_mov_b64 exec, 0x00ff00ff")
        a(f"buffer_store_dwordx4 v[{D}:{D+3}], v4, s[36:39], s45 offen sc1")
        self.stamp(3)
        a("L_Fdone:")
        self.finish()

    def roleO(self):
        a = self.a
        W = 64
        a("s_sub_u32 s40, s3, 10")
        a(f"s_mov_b32 s38, {WS_SIZE}"); a("s_mov_b32 s39, 0x20000")
        a("s_cmp_lg_u32 s40, 0")
        a("s_cbranch_scc1 L_Onoclr")
        a("s_setprio 3")
        a("v_lshlrev_b32 v4, 4, v0")
        for i in range(4): a(f"v_mov_b32 v{8+i}, -1")
        a(f"s_mul_i32 s41, s2, {CLR_SHARE}"); a(f"s_add_u32 s41, s41, {STAT}")
        a("s_add_u32 s42, s41, 4096")
        a("s_add_u32 s43, s29, s28"); a("s_and_b32 s43, s43, 3"); a("s_lshl_b32 s43, s43, 8")
        a("s_lshr_b32 s44, s29, 2"); a("s_lshl_b32 s44, s44, 10"); a("s_add_u32 s43, s43, s44")
        a("s_lshl_b32 s44, s28, 12"); a("s_add_u32 s43, s43, s44")
        a("s_mov_b32 s50, 256"); a("s_mov_b32 s51, 0x20000")
        a("s_waitcnt lgkmcnt(0)")
        a("s_mov_b64 s[36:37], s[26:27]")
        a("s_mov_b64 s[48:49], s[24:25]")
        for i in range(4):
            a(f"buffer_store_dwordx4 v[8:11], v4, s[36:39], s41 offen offset:{1024*i} sc1")
        a("s_mov_b32 exec_hi, 0")
        a("buffer_store_dwordx4 v[8:11], v4, s[36:39], s42 offen sc1")
        a("s_mov_b32 exec_lo, 0xffff")
        a("buffer_store_dwordx4 v[8:11], v4, s[36:39], s43 offen sc1")
        a("s_mov_b64 exec, -1")
        a("s_barrier")
        a("v_mov_b32 v5, 1"); a("v_mov_b32 v6, 0")
        a("s_waitcnt vmcnt(0)")
        a("s_mov_b64 exec, 1")
        a("buffer_store_byte v5, v6, s[48:51], s2 offen sc1")
        a("s_mov_b64 exec, -1")
        self.set_flag(FL_CLR, 5, 3)
        self.stamp(1)
        a("v_lshlrev_b32 v4, 2, v0")
        a(f"s_mov_b32 s77, {self.gspin}")
        a("s_mov_b32 s41, 0x01010101")
        a("L_flpoll:")
        a("buffer_load_dword v5, v4, s[48:51], 0 offen sc1")
        a("s_waitcnt vmcnt(0)")
        a("v_cmp_ne_u32 vcc, s41, v5")
        a("s_sub_u32 s77, s77, 1")
        a("s_cbranch_scc1 L_flok")
        a("s_cbranch_vccnz L_flpoll")
        a("L_flok:")
        self.set_flag(FL_ALL, 5, 3)
        self.stamp(2)
        a("s_setprio 0")
        a("s_branch L_Ogo")
        a("L_Onoclr:")
        a("s_waitcnt lgkmcnt(0)")
        a("s_mov_b64 s[36:37], s[26:27]")
        a("s_barrier")
        a("L_Ogo:")
        a("s_cmp_ge_u32 s29, 8")
        a("s_cselect_b64 s[32:33], s[20:21], s[12:13]")
        a("s_cselect_b32 s41, 36, 32")
        a("s_mul_i32 s41, s41, 1152")
        a("s_lshl_b32 s34, s41, 7")
        a("s_mov_b32 s35, 0x20000")
        a("s_mul_i32 s41, s41, s31"); a("s_mul_i32 s42, s40, 384"); a("s_add_u32 s41, s41, s42")
        a("v_mul_u32_u24 v6, 4608, v2")
        a("v_lshl_add_u32 v6, v1, 4, v6")
        for t in range(4):
            for k in range(3):
                r = W + 4 * (3 * t + k)
                a(f"buffer_load_dwordx4 v[{r}:{r+3}], v6, s[32:35], s41 offen offset:{t*1152 + k*128} nt")
        M = 60
        A0 = 40
        D = 28
        a("s_cmp_ge_u32 s29, 8")
        a("s_cbranch_scc1 L_Ow2")
        self.stamp(3)
        a("s_setprio 3")
        self.masks(M, 4, 5)
        a("v_lshlrev_b32 v4, 4, v1")
        a("s_lshl_b32 s42, s28, 8"); a("s_lshr_b32 s43, s30, 2"); a("s_lshl_b32 s43, s43, 3"); a("s_add_u32 s42, s42, s43"); a(f"s_add_u32 s42, s42, {STAT}")
        a("v_lshlrev_b32 v5, 10, v1")
        a("v_lshl_add_u32 v5, v2, 4, v5")
        a("s_lshl_b32 s43, s28, 14"); a("s_lshl_b32 s44, s30, 7"); a("s_add_u32 s43, s43, s44"); a(f"s_add_u32 s43, s43, {OBUF}")
        a("s_add_u32 s44, s43, 8192")
        a(f"s_mov_b32 s45, {LOG2E:#x}")
        a("s_mov_b32 s46, s31")
        self.spin_lds(FL_ALL, 1, 7, 3)
        a(f"s_mov_b32 s77, {self.gspin}")
        a("L_opoll:")
        a("buffer_load_dwordx2 v[8:9], v4, s[36:39], s42 offen sc1")
        a("buffer_load_dwordx2 v[10:11], v4, s[36:39], s42 offen offset:128 sc1")
        a("buffer_load_dwordx4 v[12:15], v5, s[36:39], s43 offen sc1")
        a("buffer_load_dwordx4 v[16:19], v5, s[36:39], s44 offen sc1")
        a("s_waitcnt vmcnt(0)")
        self.sentinel_check(range(8, 20), 7, "L_opoll")
        self.stamp(4)
        a("v_max_f32 v20, v8, v10")
        a("s_nop 0")
        self.red8([20], "max")
        a("v_sub_f32 v8, v8, v20"); a("v_sub_f32 v10, v10, v20")
        a("v_mul_f32 v8, s45, v8"); a("v_mul_f32 v10, s45, v10")
        a("v_exp_f32 v8, v8"); a("v_exp_f32 v10, v10")
        a("s_nop 0")
        a("v_mul_f32 v20, v8, v9"); a("v_fmac_f32 v20, v10, v11")
        for i in range(4):
            a(f"v_mul_f32 v{12+i}, v8, v{12+i}")
        for i in range(4):
            a(f"v_fmac_f32 v{12+i}, v10, v{16+i}")
        self.red8([20, 12, 13, 14, 15])
        a("v_rcp_f32 v20, v20")
        a("s_nop 0")
        for i in range(4):
            a(f"v_mul_f32 v{12+i}, v20, v{12+i}")
        for i in range(4):
            a(f"v_cvt_pk_bf16_f32 v{12+i}, v{12+i}, v{12+i}")
        for t in range(4):
            self.build(A0 + 4*t, 12 + t, M)
        a("s_nop 1")
        for t in range(4):
            for k in range(3):
                r = W + 4 * (3 * t + k); d = D + 4 * k
                a(f"v_mfma_f32_16x16x32_bf16 v[{d}:{d+3}], v[{A0+4*t}:{A0+4*t+3}], v[{r}:{r+3}], {'0' if t == 0 else f'v[{d}:{d+3}]'}")
        a("s_branch L_Opub")
        a("L_Ow2:")
        a("v_lshrrev_b32 v4, 4, v0")
        a("v_mul_u32_u24 v7, 1152, v4")
        a("v_lshl_add_u32 v7, v1, 4, v7")
        a("v_and_b32 v5, 8, v0")
        a("v_lshl_add_u32 v7, v5, 27, v7")
        a(f"s_add_u32 s42, s41, {32*1152}")
        for k in range(3):
            r = W + 4 * (12 + k)
            a(f"buffer_load_dwordx4 v[{r}:{r+3}], v7, s[32:35], s42 offen offset:{k*128} nt")
        self.stamp(3)
        a("s_setprio 3")
        a("v_mul_u32_u24 v6, 18432, v1")
        a("v_lshl_add_u32 v7, v4, 2, v6")
        a("v_mul_u32_u24 v5, 18432, v5")
        a("v_add_u32 v7, v7, v5")
        a("v_lshl_add_u32 v6, v2, 4, v6")
        self.masks(M, 4, 5)
        a("s_mul_i32 s42, s31, 144"); a(f"s_add_u32 s42, s42, {FBUF}")
        a(f"s_add_u32 s43, s42, {8*18432}")
        a(f"s_mov_b32 s45, {LOG2E | 0x80000000:#x}")
        a("s_add_u32 s46, s31, 128")
        self.spin_lds(FL_ALL, 1, 5, 3)
        a(f"s_mov_b32 s77, {self.gspin}")
        a("L_hpoll:")
        a("buffer_load_dwordx4 v[8:11], v6, s[36:39], s42 offen sc1")
        a("buffer_load_dwordx4 v[14:17], v6, s[36:39], s43 offen sc1")
        a("buffer_load_dword v12, v7, s[36:39], s42 offen offset:128 sc1")
        a("s_waitcnt vmcnt(0)")
        self.sentinel_check([8, 9, 10, 11, 12, 14, 15, 16, 17], 5, "L_hpoll")
        self.stamp(4)
        self.red8([8, 9, 10, 11, 12, 14, 15, 16, 17])
        a(f"v_mov_b32_dpp v18, v12 row_ror:8 {DPP}")
        for i in range(5):
            self.bfr2(8 + i, 14 + i, 8 + i, 14 + i)
        for i in range(5):
            a(f"v_mul_f32 v{20+i}, s45, v{8+i}")
        for i in range(5):
            a(f"v_exp_f32 v{20+i}, v{20+i}")
        for i in range(5):
            a(f"v_add_f32 v{20+i}, 1.0, v{20+i}")
        for i in range(5):
            a(f"v_rcp_f32 v{20+i}, v{20+i}")
        for i in range(5):
            a(f"v_mul_f32 v{8+i}, v{8+i}, v{20+i}")
        for i in range(5):
            self.bfr(8 + i, 8 + i)
        for i in range(5):
            a(f"v_mul_f32 v{8+i}, v{8+i}, v{14+i}")
        for i in range(5):
            a(f"v_cvt_pk_bf16_f32 v{8+i}, v{8+i}, v{8+i}")
        for t in range(5):
            self.build(A0 + 4*t, 8 + t, M)
        a("s_nop 1")
        for t in range(5):
            for k in range(3):
                r = W + 4 * (3 * t + k); d = D + 4 * k
                a(f"v_mfma_f32_16x16x32_bf16 v[{d}:{d+3}], v[{A0+4*t}:{A0+4*t+3}], v[{r}:{r+3}], {'0' if t == 0 else f'v[{d}:{d+3}]'}")
        a("L_Opub:")
        a("v_lshrrev_b32 v4, 1, v1")
        a("v_lshlrev_b32 v4, 14, v4")
        a("v_and_b32 v5, 1, v1")
        a("v_lshl_add_u32 v4, v5, 5, v4")
        a("v_and_b32 v5, 16, v0")
        a("v_add_u32 v4, v4, v5")
        a(f"s_mul_i32 s42, s40, {3*65536}"); a("s_lshl_b32 s46, s46, 6"); a("s_add_u32 s42, s42, s46"); a(f"s_add_u32 s42, s42, {SBUF}")
        a("s_add_u32 s43, s42, 65536"); a("s_add_u32 s44, s42, 131072")
        for k in range(3):
            self.fold(D + 4*k, 8 + 4*k)
        a("s_mov_b64 exec, 0x00ff00ff")
        for k in range(3):
            a(f"buffer_store_dwordx4 v[{D+4*k}:{D+4*k+3}], v4, s[36:39], s{42+k} offen sc1")
        a("s_mov_b64 exec, 1")
        a("v_mov_b32 v5, 1")
        a(f"ds_add_u32 v3, v5 offset:{CNT_O}")
        self.stamp(5)
        self.finish()

if __name__ == "__main__":
    import argparse
    ap = argparse.ArgumentParser()
    ap.add_argument("out")
    ap.add_argument("--ts", action="store_true")
    ap.add_argument("--hmap", default="b16")
    ap.add_argument("--norot", action="store_true")
    ap.add_argument("--nopref", action="store_true")
    x = ap.parse_args()
    open(x.out, "w").write(K(ts=x.ts, hmap=x.hmap, rot=not x.norot, pref=not x.nopref).gen())
```

```python
import sys
from asmlib import *

QBUF = 0
FLAG = 131072
EPOCH = FLAG + 16384
STAT = EPOCH + 256
OBUF = STAT + 4096
FBUF = OBUF + 262144
SBUF = FBUF + 294912
WS_SIZE = SBUF + 36 * 16384
L_K = 0
L_XN = 65536
L_Q = L_XN + 2304
L_OP = L_Q + 512
L_FIN = L_OP + 4096
L_ST = L_FIN + 1024
L_FAC = L_ST + 64
L_FL = L_FAC + 32
FL_XN, FL_CLR, FL_ALL, FL_Q, CNT_ST, CNT_PV, CNT_O, CNT_FIN, FL_TAG = [4 * i for i in range(9)]
LDS_SIZE = L_FL + 64
LOG2E = 0x3fb8aa3b
SCALE = 0x3db504f3
INV576 = 0x3ae38e39
EPS = 0x3727c5ac
DPP = "row_mask:0xf bank_mask:0xf"
NWAVES = 13

class K:
    def __init__(self, ts=False, hmap="b16", rot=True, ldsspin=200000, gspin=20000, pref=True):
        self.a = Asm(); self.ts = ts; self.hmap = hmap; self.rot = rot
        self.ldsspin = ldsspin; self.gspin = gspin; self.pref = pref
    def stamp(self, i):
        if self.ts:
            self.a(f"s_memrealtime s[{80+2*i}:{81+2*i}]")
    def srd(self, d, p, n):
        a = self.a
        a(f"s_mov_b32 s{d}, s{p}"); a(f"s_mov_b32 s{d+1}, s{p+1}"); a(f"s_mov_b32 s{d+2}, {n}"); a(f"s_mov_b32 s{d+3}, 0x20000")
    def spin_lds(self, off, val, vt, vb):
        a = self.a
        l = a.label("L_sp"); d = a.label("L_spd")
        a(f"s_mov_b32 s78, {self.ldsspin}")
        a(f"{l}:")
        a(f"ds_read_b32 v{vt}, v{vb} offset:{off}")
        a("s_waitcnt lgkmcnt(0)")
        a(f"v_readfirstlane_b32 s79, v{vt}")
        a(f"s_cmp_ge_u32 s79, {val}")
        a(f"s_cbranch_scc1 {d}")
        a("s_sleep 1")
        a("s_sub_u32 s78, s78, 1")
        a(f"s_cbranch_scc0 {l}")
        a(f"{d}:")
    def set_flag(self, off, vt, vb):
        a = self.a
        a(f"v_mov_b32 v{vt}, 1")
        a(f"ds_write_b32 v{vb}, v{vt} offset:{off}")
    def arrive(self, off, vt, vb):
        a = self.a
        a(f"v_mov_b32 v{vt}, 1")
        a("s_mov_b64 exec, 1")
        a(f"ds_add_rtn_u32 v{vt}, v{vb}, v{vt} offset:{off}")
        a("s_mov_b64 exec, -1")
        a("s_waitcnt lgkmcnt(0)")
        a(f"v_readfirstlane_b32 s79, v{vt}")
    def masks(self, m, t0, t1):
        a = self.a
        a(f"v_and_b32 v{t0}, 1, v1")
        a(f"v_lshlrev_b32 v{t0}, 4, v{t0}")
        a(f"v_mov_b32 v{t1}, 0xffff")
        a(f"v_lshlrev_b32 v{t0}, v{t0}, v{t1}")
        a(f"v_lshrrev_b32 v{t1}, 1, v1")
        for j in range(4):
            a(f"v_cmp_eq_u32 vcc, {j}, v{t1}")
            a("s_nop 1")
            a(f"v_cndmask_b32 v{m+j}, 0, v{t0}, vcc")
    def build(self, op, src, m):
        for j in range(4):
            self.a(f"v_and_b32 v{op+j}, v{src}, v{m+j}")
    def fold(self, d, u):
        a = self.a
        for r in range(4):
            a(f"v_permlane32_swap_b32 v{d+r}, v{u+r}")
        for r in range(4):
            a(f"v_add_f32_dpp v{d+r}, v{u+r}, v{d+r} row_ror:8 {DPP}")
    def red8(self, regs, op="add"):
        a = self.a
        for pat in ("quad_perm:[1,0,3,2]", "quad_perm:[2,3,0,1]", "row_half_mirror"):
            if len(regs) < 3: a(f"s_nop {2 - len(regs)}")
            for r in regs:
                a(f"v_{op}_f32_dpp v{r}, v{r}, v{r} {pat} {DPP}")
    def redrows(self, r, t, op="add"):
        a = self.a
        for sw in ("v_permlane16_swap_b32", "v_permlane32_swap_b32"):
            a(f"v_mov_b32 v{t}, v{r}")
            a("s_nop 1")
            a(f"{sw} v{r}, v{t}")
            a("s_nop 1")
            a(f"v_{op}_f32 v{r}, v{r}, v{t}")
    def allred(self, r, t, op="add"):
        a = self.a
        a("s_nop 1")
        self.red8([r], op)
        a("s_nop 1")
        a(f"v_{op}_f32_dpp v{r}, v{r}, v{r} row_mirror {DPP}")
        self.redrows(r, t, op)
    def bfr(self, d, s):
        self.a(f"v_cvt_pk_bf16_f32 v{d}, v{s}, v{s}")
        self.a(f"v_and_b32 v{d}, 0xffff0000, v{d}")
    def bfr2(self, d0, d1, s0, s1):
        a = self.a
        a(f"v_cvt_pk_bf16_f32 v{d1}, v{s0}, v{s1}")
        a(f"v_lshlrev_b32 v{d0}, 16, v{d1}")
        a(f"v_and_b32 v{d1}, 0xffff0000, v{d1}")
    def sentinel_check(self, regs, t, retry, done=None):
        a = self.a
        regs = list(regs)
        first = True
        while regs:
            if first:
                if len(regs) >= 3:
                    a(f"v_max3_u32 v{t}, v{regs[0]}, v{regs[1]}, v{regs[2]}"); regs = regs[3:]
                else:
                    a(f"v_max_u32 v{t}, v{regs[0]}, v{regs[-1]}"); regs = []
                first = False
            elif len(regs) >= 2:
                a(f"v_max3_u32 v{t}, v{t}, v{regs[0]}, v{regs[1]}"); regs = regs[2:]
            else:
                a(f"v_max_u32 v{t}, v{t}, v{regs[0]}"); regs = []
        a(f"v_cmp_eq_u32 vcc, -1, v{t}")
        a("s_sub_u32 s77, s77, 1")
        ok = a.label("L_ok")
        a(f"s_cbranch_scc1 {ok}")
        a(f"s_cbranch_vccnz {retry}")
        a(f"{ok}:")
    def finish(self):
        a = self.a
        if self.ts:
            a("s_branch L_ts")
        else:
            a("s_endpgm")

    def gen(self):
        a = self.a
        if self.ts:
            for i in range(1, 8):
                a(f"s_mov_b64 s[{80+2*i}:{81+2*i}], 0")
        self.stamp(0)
        a("s_cmp_ge_u32 s2, 256")
        a("s_cbranch_scc1 L_end")
        a("s_load_dwordx16 s[4:19], s[0:1], 0")
        a("s_load_dwordx8 s[20:27], s[0:1], 64")
        a("v_lshrrev_b32 v1, 6, v0")
        a("v_and_b32 v0, 63, v0")
        a("v_readfirstlane_b32 s3, v1")
        if self.hmap == "b16":
            a("s_lshr_b32 s28, s2, 4"); a("s_and_b32 s29, s2, 15")
        else:
            a("s_and_b32 s28, s2, 7"); a("s_lshl_b32 s28, s28, 1"); a("s_lshr_b32 s29, s2, 3"); a("s_and_b32 s30, s29, 1")
            a("s_add_u32 s28, s28, s30"); a("s_lshr_b32 s29, s29, 1")
        a("v_and_b32 v1, 7, v0")
        a("v_lshrrev_b32 v2, 3, v0")
        a(f"v_mov_b32 v3, {L_FL}")
        a("s_and_b32 s30, s29, 7")
        a("s_lshl_b32 s31, s28, 3"); a("s_add_u32 s31, s31, s30")
        a("s_cmp_ge_u32 s3, 10"); a("s_cbranch_scc1 L_roleO")
        a("s_cmp_ge_u32 s3, 5"); a("s_cbranch_scc1 L_roleF")
        a("s_cmp_ge_u32 s3, 1"); a("s_cbranch_scc1 L_roleA")
        self.roleQ()
        a("L_roleA:"); self.roleA()
        a("L_roleF:"); self.roleF()
        a("L_roleO:"); self.roleO()
        if self.ts:
            a("L_ts:")
            a("s_waitcnt lgkmcnt(0)")
            a("s_mov_b32 s56, s26"); a("s_mov_b32 s57, s27"); a("s_mov_b32 s58, 0x40000000"); a("s_mov_b32 s59, 0x20000")
            a("s_lshl_b32 s76, s2, 4"); a("s_add_u32 s76, s76, s3"); a("s_lshl_b32 s76, s76, 6"); a("s_add_u32 s76, s76, 0x10000000")
            a("s_mov_b64 exec, 1")
            a("v_mov_b32 v2, 0")
            for i in range(8):
                a(f"v_mov_b32 v4, s{80+2*i}"); a(f"v_mov_b32 v5, s{81+2*i}")
                a(f"buffer_store_dwordx2 v[4:5], v2, s[56:59], s76 offen offset:{i*8}")
                a("s_nop 1")
        a("L_end:")
        a("s_endpgm")
        return wrap(a.text(), 256, 64 * NWAVES, LDS_SIZE, 128, extra_desc="  .amdhsa_float_denorm_mode_32 3\n")

    def roleQ(self):
        a = self.a
        W = 56
        a("s_setprio 3")
        a("v_lshlrev_b32 v4, 4, v0")
        a("v_lshlrev_b32 v5, 2, v0")
        a("v_lshlrev_b32 v6, 13, v2")
        a("v_lshl_add_u32 v6, v1, 4, v6")
        a("s_add_u32 s41, s29, s28"); a("s_and_b32 s41, s41, 3")
        a("s_lshr_b32 s42, s29, 2")
        a(f"s_mul_i32 s40, s42, {144*8192}")
        a("s_lshl_b32 s43, s28, 9"); a("s_add_u32 s40, s40, s43")
        a("s_lshl_b32 s43, s41, 7"); a("s_add_u32 s40, s40, s43")
        a("s_mov_b32 s34, 1152"); a("s_mov_b32 s35, 0x20000")
        a(f"s_mov_b32 s38, {576*4096*2}"); a("s_mov_b32 s39, 0x20000")
        a("v_mov_b32 v14, 0"); a("v_mov_b32 v15, 0"); a("v_mov_b32 v16, 0"); a("v_mov_b32 v17, 0")
        a("ds_write_b128 v3, v[14:17]")
        a("ds_write_b128 v3, v[14:17] offset:16")
        a("s_waitcnt lgkmcnt(0)")
        a("s_mov_b64 s[32:33], s[4:5]")
        a("s_mov_b64 s[36:37], s[10:11]")
        a(f"s_load_dword s60, s[26:27], {EPOCH}")
        a("buffer_load_dwordx4 v[8:11], v4, s[32:35], 0 offen")
        a("buffer_load_dword v12, v5, s[32:35], 0 offen offset:1024")
        for t in range(18):
            a(f"buffer_load_dwordx4 v[{W+4*t}:{W+4*t+3}], v6, s[36:39], s40 offen nt")
            if t < 17: a("s_add_u32 s40, s40, 65536")
        a("s_barrier")
        self.stamp(1)
        self.srd(44, 26, WS_SIZE)
        M = 48
        self.masks(M, 52, 53)
        a("s_waitcnt vmcnt(18)")
        F = 14
        for i in range(5):
            a(f"v_lshlrev_b32 v{F+2*i}, 16, v{8+i}")
            a(f"v_and_b32 v{F+2*i+1}, 0xffff0000, v{8+i}")
        a(f"v_add_f32 v24, v{F}, v{F+1}")
        for i in range(2, 10):
            a(f"v_add_f32 v24, v24, v{F+i}")
        self.allred(24, 25)
        a(f"v_mul_f32 v24, {INV576:#x}, v24")
        a(f"v_sub_f32 v26, v{F}, v24")
        a("v_mul_f32 v25, v26, v26")
        for i in range(1, 8):
            a(f"v_sub_f32 v26, v{F+i}, v24")
            a("v_fmac_f32 v25, v26, v26")
        a("s_mov_b32 exec_hi, 0")
        for i in range(8, 10):
            a(f"v_sub_f32 v26, v{F+i}, v24")
            a("v_fmac_f32 v25, v26, v26")
        a("s_mov_b32 exec_hi, -1")
        self.allred(25, 26)
        a(f"v_mul_f32 v25, {INV576:#x}, v25")
        self.bfr2(24, 25, 24, 25)
        a(f"v_add_f32 v25, {EPS:#x}, v25")
        self.bfr(25, 25)
        a("v_sqrt_f32 v25, v25")
        a("s_nop 0")
        self.bfr(25, 25)
        a("v_rcp_f32 v26, v25")
        for i in range(10):
            a(f"v_sub_f32 v{F+i}, v{F+i}, v24")
        for i in range(0, 10, 2):
            self.bfr2(F+i, F+i+1, F+i, F+i+1)
        for i in range(10):
            a(f"v_mul_f32 v27, v{F+i}, v26")
            a(f"v_fma_f32 v{F+i}, -v27, v25, v{F+i}")
            a(f"v_fma_f32 v27, v{F+i}, v26, v27")
            a(f"v_cvt_pk_bf16_f32 v{28+i}, v27, v27")
        a("v_lshlrev_b32 v4, 5, v0")
        a(f"v_add_u32 v4, {L_XN}, v4")
        a("ds_write_b128 v4, v[28:31]")
        a("ds_write_b128 v4, v[32:35] offset:16")
        a("v_lshlrev_b32 v4, 3, v0")
        a(f"v_add_u32 v4, {L_XN + 2048}, v4")
        a("s_mov_b32 exec_hi, 0")
        a("ds_write_b64 v4, v[36:37]")
        a("s_mov_b32 exec_hi, -1")
        self.set_flag(FL_XN, 5, 3)
        a("s_mul_i32 s43, s42, 576"); a(f"s_add_u32 s43, s43, {L_XN}")
        a("v_lshl_add_u32 v4, v2, 2, s43")
        MU = 8
        for t in range(0, 18, 2):
            a(f"ds_read2_b32 v[{MU+t}:{MU+t+1}], v4 offset0:{8*t} offset1:{8*t+8}")
        a("s_waitcnt lgkmcnt(0)")
        self.stamp(2)
        OP = [28, 32]; D = 36; U = 40
        self.build(OP[0], MU, M)
        for t in range(18):
            if t < 17: self.build(OP[(t+1) & 1], MU + t + 1, M)
            else: a("s_nop 0")
            a(f"s_waitcnt vmcnt({17-t})")
            o = OP[t & 1]
            a(f"v_mfma_f32_16x16x32_bf16 v[{D}:{D+3}], v[{o}:{o+3}], v[{W+4*t}:{W+4*t+3}], {'0' if t == 0 else f'v[{D}:{D+3}]'}")
        a("v_lshlrev_b32 v4, 6, v1")
        a("v_and_b32 v5, 16, v0")
        a("v_lshl_add_u32 v4, v5, 1, v4")
        a("s_lshl_b32 s40, s28, 13"); a("s_lshl_b32 s43, s42, 11"); a("s_add_u32 s43, s43, s40")
        a("s_lshl_b32 s41, s41, 9"); a("s_add_u32 s43, s43, s41")
        a("s_add_u32 s60, s60, 1")
        a("s_add_u32 s41, s40, 4096")
        for i in range(4):
            a(f"v_mov_b32 v{9+2*i}, s60")
        for r in range(4):
            a(f"v_permlane32_swap_b32 v{D+r}, v{U+r}")
        for r in range(4):
            a(f"v_add_f32_dpp v{8+2*r}, v{U+r}, v{D+r} row_ror:8 {DPP}")
        a("s_mov_b64 exec, 0x00ff00ff")
        a("buffer_store_dwordx4 v[8:11], v4, s[44:47], s43 offen sc1")
        a("buffer_store_dwordx4 v[12:15], v4, s[44:47], s43 offen offset:16 sc1")
        a("s_mov_b64 exec, -1")
        self.stamp(3)
        a("v_lshlrev_b32 v4, 4, v0")
        a(f"s_mov_b32 s77, {self.gspin}")
        a("L_qpoll:")
        G = 16
        for r in range(8):
            a(f"buffer_load_dwordx4 v[{G+4*r}:{G+3+4*r}], v4, s[44:47], s{40 + r // 4} offen offset:{1024*(r % 4)} sc1")
        a("s_waitcnt vmcnt(0)")
        if self.ts:
            a(f"s_cmp_eq_u32 s77, {self.gspin}"); a("s_cbranch_scc0 L_qp2"); self.stamp(4); a("L_qp2:")
        a(f"v_xor_b32 v5, s60, v{G+1}")
        for i in range(1, 16):
            a(f"v_bitop3_b32 v5, v5, v{G+1+2*i}, s60 bitop3:0xf6")
        a("v_cmp_ne_u32 vcc, 0, v5")
        a("s_sub_u32 s77, s77, 1")
        a("s_cbranch_scc1 L_qok")
        a("s_cbranch_vccnz L_qpoll")
        a("L_qok:")
        for hf in range(2):
            for e in range(2):
                b = G + 4 * hf + 2 * e
                a(f"v_add_f32 v{b}, v{b}, v{b+8}")
                a(f"v_add_f32 v{b+16}, v{b+16}, v{b+24}")
        for hf in range(2):
            for e in range(2):
                b = G + 4 * hf + 2 * e
                a(f"v_add_f32 v{b}, v{b}, v{b+16}")
        a(f"v_cvt_pk_bf16_f32 v12, v{G}, v{G+2}")
        a(f"v_cvt_pk_bf16_f32 v13, v{G+4}, v{G+6}")
        a("v_lshlrev_b32 v4, 2, v0")
        a(f"v_add_u32 v4, {L_Q}, v4")
        a("ds_write2_b32 v4, v12, v13 offset0:0 offset1:64")
        self.set_flag(FL_Q, 5, 3)
        self.stamp(5)
        self.finish()

    def roleA(self):
        a = self.a
        V = 64; QF = 16; KF = 32; S = 48
        a("s_setprio 2")
        a("s_sub_u32 s40, s3, 1")
        a("v_lshrrev_b32 v4, 4, v0")
        a("v_and_b32 v5, 15, v0")
        a("v_xor_b32 v6, v4, v5")
        a("v_lshlrev_b32 v6, 4, v6")
        a("v_lshl_add_u32 v8, v4, 8, v6")
        for t in range(1, 4):
            a(f"v_xor_b32 v{8+t}, {t<<6}, v8")
        a("v_lshlrev_b32 v7, 4, v5")
        a("v_lshl_add_u32 v7, v4, 10, v7")
        a("s_lshl_b32 s41, s28, 24"); a("s_lshl_b32 s42, s29, 16"); a("s_add_u32 s41, s41, s42")
        a("s_lshl_b32 s42, s40, 14"); a("s_add_u32 s41, s41, s42"); a(f"s_add_u32 s41, s41, {61440*256}")
        for T in range(4):
            if self.rot:
                a(f"s_add_u32 s43, s29, s40"); a(f"s_add_u32 s43, s43, {T}"); a("s_and_b32 s43, s43, 3"); a("s_lshl_b32 s43, s43, 12")
                a(f"s_add_u32 s{44+T}, s41, s43")
            else:
                a(f"s_add_u32 s{44+T}, s41, {T*4096}")
        a("s_mov_b32 s34, 0x10000000"); a("s_mov_b32 s35, 0x20000"); a("s_mov_b32 s38, 0x10000000"); a("s_mov_b32 s39, 0x20000")
        a("s_waitcnt lgkmcnt(0)")
        a("s_mov_b64 s[32:33], s[6:7]")
        a("s_mov_b64 s[36:37], s[8:9]")
        a("s_mov_b32 m0, s42")
        a("s_barrier")
        for T in range(4):
            for t in range(4):
                a(f"buffer_load_dwordx4 v{8+t}, s[32:35], s{44+T} offen offset:{1024*t} nt lds")
            if T < 3:
                a("s_add_u32 m0, m0, 4096")
                a("s_nop 0")
        self.stamp(1)
        for T in range(4):
            for r in range(4):
                i = 4 * T + r
                a(f"buffer_load_dwordx4 v[{V+4*i}:{V+4*i+3}], v7, s[36:39], s{44+T} offen offset:{256*r} nt")
        self.stamp(2)
        self.srd(48, 26, WS_SIZE)
        a("v_lshl_add_u32 v8, v5, 8, v6")
        a("v_add_u32 v8, s42, v8")
        for c in range(1, 4):
            a(f"v_xor_b32 v{8+c}, {c<<6}, v8")
        a("v_lshrrev_b32 v12, 3, v5")
        a("v_lshlrev_b32 v13, 8, v12")
        a("v_lshl_add_u32 v13, v4, 4, v13")
        a(f"v_add_u32 v13, {L_Q}, v13")
        self.spin_lds(FL_CLR, 1, 14, 3)
        self.spin_lds(FL_Q, 1, 14, 3)
        self.stamp(3)
        for c in range(4):
            a(f"ds_read_b128 v[{QF+4*c}:{QF+4*c+3}], v13 offset:{64*c}")
        a("s_waitcnt vmcnt(16)")
        for c in range(4):
            a(f"ds_read_b128 v[{KF+4*c}:{KF+4*c+3}], v{8+c}")
        for T in range(4):
            for c in range(4):
                a(f"s_waitcnt lgkmcnt({3 if T < 3 else 3 - c})")
                a(f"v_mfma_f32_16x16x32_bf16 v[{S+4*T}:{S+4*T+3}], v[{KF+4*c}:{KF+4*c+3}], v[{QF+4*c}:{QF+4*c+3}], {'0' if c == 0 else f'v[{S+4*T}:{S+4*T+3}]'}")
                if T < 3:
                    a(f"ds_read_b128 v[{KF+4*c}:{KF+4*c+3}], v{8+c} offset:{4096*(T+1)}")
        M = 16
        self.masks(M, 20, 21)
        a(f"s_mov_b32 s43, {SCALE:#x}")
        for i in range(0, 16, 2):
            self.bfr2(S+i, S+i+1, S+i, S+i+1)
        for i in range(16):
            a(f"v_mul_f32 v{S+i}, s43, v{S+i}")
        for i in range(0, 16, 2):
            self.bfr2(S+i, S+i+1, S+i, S+i+1)
        a(f"v_max3_f32 v22, v{S}, v{S+1}, v{S+2}")
        for i in range(3, 15, 2):
            a(f"v_max3_f32 v22, v22, v{S+i}, v{S+i+1}")
        a(f"v_max_f32 v22, v22, v{S+15}")
        self.redrows(22, 24, "max")
        a(f"s_mov_b32 s43, {LOG2E:#x}")
        for i in range(16):
            a(f"v_sub_f32 v{S+i}, v{S+i}, v22")
        for i in range(16):
            a(f"v_mul_f32 v{S+i}, s43, v{S+i}")
        for i in range(16):
            a(f"v_exp_f32 v{S+i}, v{S+i}")
        a(f"v_add_f32 v23, v{S}, v{S+1}")
        for i in range(2, 16):
            a(f"v_add_f32 v23, v23, v{S+i}")
        self.redrows(23, 24, "add")
        for i in range(16):
            a(f"v_cvt_pk_bf16_f32 v{S+i}, v{S+i}, v{S+i}")
        a("v_lshlrev_b32 v13, 3, v12")
        a(f"v_add_u32 v13, {L_ST}, v13")
        a("s_lshl_b32 s52, s40, 4")
        a("v_add_u32 v14, s52, v13")
        a("s_mov_b64 exec, 0x101")
        a("ds_write_b64 v14, v[22:23]")
        a("s_mov_b64 exec, -1")
        self.arrive(CNT_ST, 9, 3)
        a("s_lshl_b32 s53, s28, 4"); a("s_add_u32 s53, s53, s29")
        a("s_cmp_lg_u32 s79, 3")
        a("s_cbranch_scc1 L_nostat")
        for w in range(4):
            a(f"ds_read_b64 v[{24+2*w}:{25+2*w}], v13 offset:{16*w}")
        a("s_waitcnt lgkmcnt(0)")
        a("v_max3_f32 v22, v24, v26, v28")
        a("v_max_f32 v22, v22, v30")
        for w in range(4):
            a(f"v_sub_f32 v{32+w}, v{24+2*w}, v22")
        for w in range(4):
            a(f"v_mul_f32 v{32+w}, s43, v{32+w}")
        for w in range(4):
            a(f"v_exp_f32 v{32+w}, v{32+w}")
        a("v_mul_f32 v23, v32, v25")
        for w in range(1, 4):
            a(f"v_fmac_f32 v23, v{32+w}, v{25+2*w}")
        a("v_lshlrev_b32 v14, 4, v12")
        a(f"v_add_u32 v14, {L_FAC}, v14")
        a("v_lshlrev_b32 v15, 3, v12")
        a("s_lshl_b32 s54, s53, 4"); a(f"s_add_u32 s54, s54, {STAT}")
        a("s_mov_b64 exec, 0x101")
        a("ds_write_b128 v14, v[32:35]")
        a("buffer_store_dwordx2 v[22:23], v15, s[48:51], s54 offen sc1")
        a("s_mov_b64 exec, -1")
        a("L_nostat:")
        self.stamp(4)
        OP = [36, 40]; D = 44
        self.build(OP[0], S, M)
        for i in range(16):
            if i < 15: self.build(OP[(i+1) & 1], S + i + 1, M)
            else: a("s_nop 0")
            a(f"s_waitcnt vmcnt({15-i})")
            o = OP[i & 1]
            a(f"v_mfma_f32_16x16x32_bf16 v[{D}:{D+3}], v[{o}:{o+3}], v[{V+4*i}:{V+4*i+3}], {'0' if i == 0 else f'v[{D}:{D+3}]'}")
        a("v_lshlrev_b32 v13, 4, v0")
        a(f"v_add_u32 v13, {L_OP}, v13")
        a("s_lshl_b32 s52, s40, 10")
        a("v_add_u32 v14, s52, v13")
        a("v_lshrrev_b32 v15, 5, v0")
        a("v_lshlrev_b32 v12, 9, v15")
        a("v_lshlrev_b32 v15, 4, v15")
        a(f"v_add_u32 v15, {L_FAC}, v15")
        a("s_nop 0")
        a(f"ds_write_b128 v14, v[{D}:{D+3}]")
        self.arrive(CNT_PV, 9, 3)
        a("s_cmp_lg_u32 s79, 3")
        a("s_cbranch_scc1 L_nopub")
        a("ds_read_b128 v[16:19], v15")
        for w in range(4):
            a(f"ds_read_b128 v[{20+4*w}:{23+4*w}], v13 offset:{1024*w}")
        a("v_lshl_add_u32 v12, v5, 5, v12")
        a("v_and_b32 v14, 16, v0")
        a("v_add_u32 v12, v12, v14")
        a("s_lshl_b32 s54, s53, 10"); a(f"s_add_u32 s54, s54, {OBUF}")
        a("s_waitcnt lgkmcnt(3)")
        for r in range(4):
            a(f"v_mul_f32 v{36+r}, v16, v{20+r}")
        for w in range(1, 4):
            a(f"s_waitcnt lgkmcnt({3-w})")
            for r in range(4):
                a(f"v_fmac_f32 v{36+r}, v{16+w}, v{20+4*w+r}")
        a("buffer_store_dwordx4 v[36:39], v12, s[48:51], s54 offen sc1")
        a("L_nopub:")
        self.stamp(5)
        a("s_cmp_lt_u32 s29, 8")
        a("s_cbranch_scc1 L_Adone")
        if self.hmap == "b16":
            a("s_mov_b32 s55, s31")
        else:
            a("s_lshl_b32 s55, s30, 4"); a("s_add_u32 s55, s55, s28")
        a("s_cmp_ge_u32 s55, 36")
        a("s_cbranch_scc1 L_Adone")
        self.srd(32, 4, 1152)
        self.srd(36, 22, 1152)
        a("v_lshlrev_b32 v9, 1, v5")
        a("s_lshl_b32 s56, s55, 5")
        a("buffer_load_ushort v10, v9, s[32:35], s56 offen")
        a("v_lshlrev_b32 v8, 4, v0")
        a("s_lshl_b32 s57, s55, 14"); a("s_lshl_b32 s58, s40, 12"); a("s_add_u32 s57, s57, s58"); a(f"s_add_u32 s57, s57, {SBUF}")
        a("v_and_b32 v11, 3, v0")
        a("v_lshlrev_b32 v11, 4, v11")
        a("v_lshl_add_u32 v11, v4, 6, v11")
        a("s_lshl_b32 s58, s40, 8"); a(f"s_add_u32 s58, s58, {L_FIN}")
        a("v_add_u32 v11, s58, v11")
        a("v_and_b32 v12, 1, v4")
        a("v_lshlrev_b32 v12, 9, v12")
        a("v_lshl_add_u32 v12, v5, 2, v12")
        a(f"v_add_u32 v12, {L_FIN}, v12")
        self.spin_lds(CNT_O, 3, 14, 3)
        a(f"s_mov_b32 s77, {self.gspin}")
        a("L_fpoll:")
        for r in range(4):
            a(f"buffer_load_dwordx4 v[{16+4*r}:{19+4*r}], v8, s[48:51], s57 offen offset:{1024*r} sc1")
        a("s_waitcnt vmcnt(0)")
        self.sentinel_check(range(16, 32), 14, "L_fpoll")
        self.stamp(6)
        for i in range(4):
            a(f"v_add_f32 v{16+i}, v{16+i}, v{20+i}")
            a(f"v_add_f32 v{24+i}, v{24+i}, v{28+i}")
        for i in range(4):
            a(f"v_add_f32 v{16+i}, v{16+i}, v{24+i}")
        for rot in (4, 8):
            for i in range(4):
                a(f"v_add_f32_dpp v{16+i}, v{16+i}, v{16+i} row_ror:{rot} {DPP}")
        a("s_mov_b32 exec_lo, 0x000f000f"); a("s_mov_b32 exec_hi, 0x000f000f")
        a("ds_write_b128 v11, v[16:19]")
        a("s_mov_b64 exec, -1")
        self.arrive(CNT_FIN, 14, 3)
        a("s_cmp_lg_u32 s79, 3")
        a("s_cbranch_scc1 L_Adone")
        for k in range(4):
            a(f"ds_read2_b32 v[{16+2*k}:{17+2*k}], v12 offset0:{32*k} offset1:{32*k+16}")
        a("v_lshlrev_b32 v10, 16, v10")
        a("s_waitcnt lgkmcnt(0)")
        for k in range(4):
            a(f"v_add_f32 v{16+2*k}, v{16+2*k}, v{17+2*k}")
        a("v_add_f32 v16, v16, v18"); a("v_add_f32 v20, v20, v22"); a("v_add_f32 v16, v16, v20")
        self.bfr(16, 16)
        a("v_mov_b32 v17, v16")
        a("s_nop 1")
        a("v_permlane16_swap_b32 v16, v17")
        a("s_nop 1")
        a(f"v_mul_f32 v18, {LOG2E | 0x80000000:#x}, v17")
        a("v_exp_f32 v18, v18")
        a("s_nop 0")
        a("v_add_f32 v18, 1.0, v18")
        a("v_rcp_f32 v18, v18")
        a("s_nop 0")
        a("v_mul_f32 v18, v17, v18")
        self.bfr(18, 18)
        a("v_mul_f32 v18, v16, v18")
        self.bfr(18, 18)
        a("v_add_f32 v18, v10, v18")
        a("v_cvt_pk_bf16_f32 v18, v18, v18")
        a("s_mov_b64 exec, 0xffff")
        a("buffer_store_short v18, v9, s[36:39], s56 offen")
        self.stamp(7)
        a("s_cmp_lg_u32 s55, 0")
        a("s_cbranch_scc1 L_Adone")
        a(f"ds_read_b32 v19, v3 offset:{FL_TAG}")
        a(f"s_mov_b32 s56, {EPOCH}")
        a("s_mov_b64 exec, 1")
        a("s_waitcnt lgkmcnt(0)")
        a("buffer_store_dword v19, v9, s[48:51], s56 offen sc1")
        a("L_Adone:")
        self.finish()

    def roleF(self):
        a = self.a
        W = 32
        a("s_setprio 1")
        a("s_sub_u32 s40, s3, 5")
        if self.pref:
            lp = a.label("L_nopf")
            a("s_cmp_lg_u32 s40, 0"); a(f"s_cbranch_scc1 {lp}")
            a("s_getpc_b64 s[48:49]")
            a("L_pc:")
            a(f"s_sub_u32 s48, s48, L_pc-{NAME}_kernel"); a("s_subb_u32 s49, s49, 0")
            a("v_lshlrev_b32 v4, 7, v0")
            a(f"v_min_u32 v4, L_end-{NAME}_kernel, v4")
            a("global_load_dword v100, v4, s[48:49]")
            a("v_add_u32 v4, 8192, v4")
            a(f"v_min_u32 v4, L_end-{NAME}_kernel, v4")
            a("global_load_dword v101, v4, s[48:49]")
            a(f"{lp}:")
        a("s_lshr_b32 s41, s29, 3"); a("s_mul_i32 s41, s41, 5"); a("s_add_u32 s41, s41, s40")
        a("s_lshr_b32 s42, s28, 1"); a("s_mul_i32 s42, s42, 9"); a("s_add_u32 s42, s42, s41")
        a("s_mov_b32 s43, s30")
        a(f"s_mul_i32 s44, s43, {72*9216}"); a("s_lshl_b32 s45, s42, 7"); a("s_add_u32 s44, s44, s45")
        a("v_mul_u32_u24 v6, 9216, v2")
        a("v_lshl_add_u32 v6, v1, 4, v6")
        a(f"s_mov_b32 s34, {576*4608*2}"); a("s_mov_b32 s35, 0x20000")
        a("s_bitcmp1_b32 s28, 0")
        a("s_waitcnt lgkmcnt(0)")
        a("s_cselect_b64 s[32:33], s[18:19], s[16:17]")
        a("s_barrier")
        a("s_cmp_ge_u32 s41, 9")
        a("s_cbranch_scc1 L_Fdone")
        for t in range(9):
            a(f"buffer_load_dwordx4 v[{W+4*t}:{W+4*t+3}], v6, s[32:35], s44 offen nt")
            if t < 8: a(f"s_add_u32 s44, s44, {8*9216}")
        self.stamp(1)
        a("s_setprio 3")
        self.srd(36, 26, WS_SIZE)
        M = 28
        self.masks(M, 4, 5)
        self.spin_lds(FL_XN, 1, 5, 3)
        a("s_mul_i32 s45, s43, 288"); a(f"s_add_u32 s45, s45, {L_XN}")
        a("v_lshl_add_u32 v4, v2, 2, s45")
        MU = 8
        for t in range(0, 8, 2):
            a(f"ds_read2_b32 v[{MU+t}:{MU+t+1}], v4 offset0:{8*t} offset1:{8*t+8}")
        a(f"ds_read_b32 v{MU+8}, v4 offset:256")
        a("v_lshlrev_b32 v4, 5, v1")
        a("v_and_b32 v5, 16, v0")
        a("v_add_u32 v4, v4, v5")
        a("s_and_b32 s45, s28, 1"); a("s_lshl_b32 s45, s45, 3"); a("s_add_u32 s45, s45, s43"); a("s_mul_i32 s45, s45, 18432")
        a("s_lshl_b32 s46, s42, 8"); a("s_add_u32 s45, s45, s46"); a(f"s_add_u32 s45, s45, {FBUF}")
        self.spin_lds(FL_CLR, 1, 5, 3)
        OP = [20, 24]; D = 68; U = 72
        self.build(OP[0], MU, M)
        for t in range(9):
            if t < 8: self.build(OP[(t+1) & 1], MU + t + 1, M)
            else: a("s_nop 0")
            a(f"s_waitcnt vmcnt({8-t})")
            o = OP[t & 1]
            a(f"v_mfma_f32_16x16x32_bf16 v[{D}:{D+3}], v[{o}:{o+3}], v[{W+4*t}:{W+4*t+3}], {'0' if t == 0 else f'v[{D}:{D+3}]'}")
        self.stamp(2)
        a("s_nop 7")
        self.fold(D, U)
        a("s_mov_b64 exec, 0x00ff00ff")
        a(f"buffer_store_dwordx4 v[{D}:{D+3}], v4, s[36:39], s45 offen sc1")
        self.stamp(3)
        a("L_Fdone:")
        self.finish()

    def roleO(self):
        a = self.a
        W = 64
        a("s_sub_u32 s40, s3, 10")
        a(f"s_mov_b32 s38, {WS_SIZE}"); a("s_mov_b32 s39, 0x20000")
        a("s_cmp_lg_u32 s40, 0")
        a("s_cbranch_scc1 L_Onoclr")
        a("s_setprio 3")
        a("v_lshlrev_b32 v4, 4, v0")
        for i in range(4): a(f"v_mov_b32 v{8+i}, -1")
        a("v_lshrrev_b32 v5, 2, v0"); a("v_lshlrev_b32 v5, 14, v5")
        a("v_and_b32 v6, 3, v0"); a("v_lshl_add_u32 v5, v6, 4, v5")
        a("s_lshl_b32 s47, s28, 4"); a("s_add_u32 s47, s47, s29")
        a("s_lshl_b32 s41, s47, 10"); a(f"s_add_u32 s41, s41, {OBUF}")
        a("s_lshl_b32 s42, s47, 4"); a(f"s_add_u32 s42, s42, {STAT}")
        a("s_and_b32 s43, s31, 15"); a("s_mul_i32 s43, s43, 18432")
        a("s_lshr_b32 s44, s28, 1"); a("s_mul_i32 s44, s44, 2304"); a("s_add_u32 s43, s43, s44")
        a("s_lshr_b32 s45, s29, 3"); a("s_mul_i32 s44, s45, 1280"); a("s_add_u32 s43, s43, s44"); a(f"s_add_u32 s43, s43, {FBUF}")
        a("s_lshl_b32 s44, s45, 7"); a("s_add_u32 s44, s44, s31"); a("s_lshl_b32 s44, s44, 6"); a(f"s_add_u32 s44, s44, {SBUF}")
        a(f"s_add_u32 s48, s44, {16*16384}"); a(f"s_add_u32 s49, s44, {32*16384}")
        a("s_waitcnt lgkmcnt(0)")
        a("s_mov_b64 s[36:37], s[26:27]")
        a(f"s_load_dword s60, s[26:27], {EPOCH}")
        a("s_barrier")
        a("buffer_store_dwordx4 v[8:11], v4, s[36:39], s41 offen sc1")
        a("buffer_store_dwordx4 v[8:11], v4, s[36:39], s43 offen sc1")
        a("buffer_store_dwordx4 v[8:11], v5, s[36:39], s44 offen sc1")
        a("buffer_store_dwordx4 v[8:11], v5, s[36:39], s48 offen sc1")
        a("s_mov_b64 exec, 0xffff")
        a("buffer_store_dwordx4 v[8:11], v5, s[36:39], s49 offen sc1")
        a("s_cmp_lg_u32 s45, 0")
        a("s_cbranch_scc1 L_noclr5")
        a("buffer_store_dwordx4 v[8:11], v4, s[36:39], s43 offen offset:1024 sc1")
        a("L_noclr5:")
        a("s_mov_b64 exec, 1")
        a("buffer_store_dwordx4 v[8:11], v4, s[36:39], s42 offen sc1")
        a("s_lshl_b32 s41, s47, 6"); a(f"s_add_u32 s41, s41, {FLAG}")
        a("s_waitcnt lgkmcnt(0)")
        a("s_add_u32 s60, s60, 1")
        a("v_mov_b32 v5, s60")
        a(f"ds_write_b32 v3, v5 offset:{FL_TAG}")
        a("s_waitcnt vmcnt(0)")
        a("buffer_store_dword v5, v4, s[36:39], s41 offen sc1")
        a("s_mov_b64 exec, -1")
        self.set_flag(FL_CLR, 6, 3)
        self.stamp(1)
        a("v_lshlrev_b32 v4, 6, v0")
        a("v_and_b32 v5, 0x7ff, v4")
        a("s_lshr_b32 s41, s28, 1"); a("s_lshl_b32 s41, s41, 11"); a(f"s_add_u32 s41, s41, {FLAG}")
        if self.hmap == "b16":
            a("s_mov_b32 s42, s31")
        else:
            a("s_lshl_b32 s42, s30, 4"); a("s_add_u32 s42, s42, s28")
        a("s_cmp_lt_u32 s29, 8"); a("s_cselect_b32 s42, 99, s42")
        self.spin_lds(FL_Q, 1, 6, 3)
        a(f"s_mov_b32 s77, {self.gspin}")
        a("s_cmp_lt_u32 s42, 36")
        a("s_cbranch_scc1 L_flall")
        a("L_flpoll:")
        a("buffer_load_dword v6, v5, s[36:39], s41 offen sc1")
        a("s_waitcnt vmcnt(0)")
        a("v_cmp_ne_u32 vcc, s60, v6")
        a("s_sub_u32 s77, s77, 1")
        a("s_cbranch_scc1 L_flok")
        a("s_cbranch_vccnz L_flpoll")
        a("s_branch L_flok")
        a("L_flall:")
        a(f"s_mov_b32 s41, {FLAG}"); a(f"s_mov_b32 s42, {FLAG+4096}"); a(f"s_mov_b32 s43, {FLAG+8192}"); a(f"s_mov_b32 s44, {FLAG+12288}")
        a("L_flpoll2:")
        for i in range(4):
            a(f"buffer_load_dword v{8+i}, v4, s[36:39], s{41+i} offen sc1")
        a("s_waitcnt vmcnt(0)")
        a("v_xor_b32 v6, s60, v8")
        for i in range(1, 4):
            a(f"v_bitop3_b32 v6, v6, v{8+i}, s60 bitop3:0xf6")
        a("v_cmp_ne_u32 vcc, 0, v6")
        a("s_sub_u32 s77, s77, 1")
        a("s_cbranch_scc1 L_flok")
        a("s_cbranch_vccnz L_flpoll2")
        a("L_flok:")
        self.set_flag(FL_ALL, 6, 3)
        self.stamp(2)
        a("s_setprio 0")
        a("s_branch L_Ogo")
        a("L_Onoclr:")
        a("s_waitcnt lgkmcnt(0)")
        a("s_mov_b64 s[36:37], s[26:27]")
        a("s_barrier")
        a("L_Ogo:")
        a("s_cmp_ge_u32 s29, 8")
        a("s_cselect_b64 s[32:33], s[20:21], s[12:13]")
        a("s_cselect_b32 s41, 36, 32")
        a("s_mul_i32 s41, s41, 1152")
        a("s_lshl_b32 s34, s41, 7")
        a("s_mov_b32 s35, 0x20000")
        a("s_mul_i32 s41, s41, s31"); a("s_mul_i32 s42, s40, 384"); a("s_add_u32 s41, s41, s42")
        a("v_mul_u32_u24 v6, 4608, v2")
        a("v_lshl_add_u32 v6, v1, 4, v6")
        for t in range(4):
            for k in range(3):
                r = W + 4 * (3 * t + k)
                a(f"buffer_load_dwordx4 v[{r}:{r+3}], v6, s[32:35], s41 offen offset:{t*1152 + k*128} nt")
        M = 60
        A0 = 40
        D = 28
        a("s_cmp_ge_u32 s29, 8")
        a("s_cbranch_scc1 L_Ow2")
        self.stamp(3)
        a("s_setprio 3")
        self.masks(M, 4, 5)
        a("v_lshlrev_b32 v4, 4, v1")
        a("s_lshl_b32 s42, s28, 8"); a("s_lshr_b32 s43, s30, 2"); a("s_lshl_b32 s43, s43, 3"); a("s_add_u32 s42, s42, s43"); a(f"s_add_u32 s42, s42, {STAT}")
        a("v_lshlrev_b32 v5, 10, v1")
        a("v_lshl_add_u32 v5, v2, 4, v5")
        a("s_lshl_b32 s43, s28, 14"); a("s_lshl_b32 s44, s30, 7"); a("s_add_u32 s43, s43, s44"); a(f"s_add_u32 s43, s43, {OBUF}")
        a("s_add_u32 s44, s43, 8192")
        a(f"s_mov_b32 s45, {LOG2E:#x}")
        a("s_mov_b32 s46, s31")
        self.spin_lds(FL_ALL, 1, 7, 3)
        a(f"s_mov_b32 s77, {self.gspin}")
        a("L_opoll:")
        a("buffer_load_dwordx2 v[8:9], v4, s[36:39], s42 offen sc1")
        a("buffer_load_dwordx2 v[10:11], v4, s[36:39], s42 offen offset:128 sc1")
        a("buffer_load_dwordx4 v[12:15], v5, s[36:39], s43 offen sc1")
        a("buffer_load_dwordx4 v[16:19], v5, s[36:39], s44 offen sc1")
        a("s_waitcnt vmcnt(0)")
        self.sentinel_check(range(8, 20), 7, "L_opoll")
        self.stamp(4)
        a("v_max_f32 v20, v8, v10")
        a("s_nop 0")
        self.red8([20], "max")
        a("v_sub_f32 v8, v8, v20"); a("v_sub_f32 v10, v10, v20")
        a("v_mul_f32 v8, s45, v8"); a("v_mul_f32 v10, s45, v10")
        a("v_exp_f32 v8, v8"); a("v_exp_f32 v10, v10")
        a("s_nop 0")
        a("v_mul_f32 v20, v8, v9"); a("v_fmac_f32 v20, v10, v11")
        for i in range(4):
            a(f"v_mul_f32 v{12+i}, v8, v{12+i}")
        for i in range(4):
            a(f"v_fmac_f32 v{12+i}, v10, v{16+i}")
        self.red8([20, 12, 13, 14, 15])
        a("v_rcp_f32 v20, v20")
        a("s_nop 0")
        for i in range(4):
            a(f"v_mul_f32 v{12+i}, v20, v{12+i}")
        for i in range(4):
            a(f"v_cvt_pk_bf16_f32 v{12+i}, v{12+i}, v{12+i}")
        for t in range(4):
            self.build(A0 + 4*t, 12 + t, M)
        a("s_nop 1")
        for t in range(4):
            for k in range(3):
                r = W + 4 * (3 * t + k); d = D + 4 * k
                a(f"v_mfma_f32_16x16x32_bf16 v[{d}:{d+3}], v[{A0+4*t}:{A0+4*t+3}], v[{r}:{r+3}], {'0' if t == 0 else f'v[{d}:{d+3}]'}")
        a("s_branch L_Opub")
        a("L_Ow2:")
        a("v_lshrrev_b32 v4, 4, v0")
        a("v_mul_u32_u24 v7, 1152, v4")
        a("v_lshl_add_u32 v7, v1, 4, v7")
        a("v_and_b32 v5, 8, v0")
        a("v_lshl_add_u32 v7, v5, 27, v7")
        a(f"s_add_u32 s42, s41, {32*1152}")
        for k in range(3):
            r = W + 4 * (12 + k)
            a(f"buffer_load_dwordx4 v[{r}:{r+3}], v7, s[32:35], s42 offen offset:{k*128} nt")
        self.stamp(3)
        a("s_setprio 3")
        a("v_mul_u32_u24 v6, 18432, v1")
        a("v_lshl_add_u32 v7, v4, 2, v6")
        a("v_mul_u32_u24 v5, 18432, v5")
        a("v_add_u32 v7, v7, v5")
        a("v_lshl_add_u32 v6, v2, 4, v6")
        self.masks(M, 4, 5)
        a("s_mul_i32 s42, s31, 144"); a(f"s_add_u32 s42, s42, {FBUF}")
        a(f"s_add_u32 s43, s42, {8*18432}")
        a(f"s_mov_b32 s45, {LOG2E | 0x80000000:#x}")
        a("s_add_u32 s46, s31, 128")
        self.spin_lds(FL_ALL, 1, 5, 3)
        a(f"s_mov_b32 s77, {self.gspin}")
        a("L_hpoll:")
        a("buffer_load_dwordx4 v[8:11], v6, s[36:39], s42 offen sc1")
        a("buffer_load_dwordx4 v[14:17], v6, s[36:39], s43 offen sc1")
        a("buffer_load_dword v12, v7, s[36:39], s42 offen offset:128 sc1")
        a("s_waitcnt vmcnt(0)")
        self.sentinel_check([8, 9, 10, 11, 12, 14, 15, 16, 17], 5, "L_hpoll")
        self.stamp(4)
        self.red8([8, 9, 10, 11, 12, 14, 15, 16, 17])
        a(f"v_mov_b32_dpp v18, v12 row_ror:8 {DPP}")
        for i in range(5):
            self.bfr2(8 + i, 14 + i, 8 + i, 14 + i)
        for i in range(5):
            a(f"v_mul_f32 v{20+i}, s45, v{8+i}")
        for i in range(5):
            a(f"v_exp_f32 v{20+i}, v{20+i}")
        for i in range(5):
            a(f"v_add_f32 v{20+i}, 1.0, v{20+i}")
        for i in range(5):
            a(f"v_rcp_f32 v{20+i}, v{20+i}")
        for i in range(5):
            a(f"v_mul_f32 v{8+i}, v{8+i}, v{20+i}")
        for i in range(5):
            self.bfr(8 + i, 8 + i)
        for i in range(5):
            a(f"v_mul_f32 v{8+i}, v{8+i}, v{14+i}")
        for i in range(5):
            a(f"v_cvt_pk_bf16_f32 v{8+i}, v{8+i}, v{8+i}")
        for t in range(5):
            self.build(A0 + 4*t, 8 + t, M)
        a("s_nop 1")
        for t in range(5):
            for k in range(3):
                r = W + 4 * (3 * t + k); d = D + 4 * k
                a(f"v_mfma_f32_16x16x32_bf16 v[{d}:{d+3}], v[{A0+4*t}:{A0+4*t+3}], v[{r}:{r+3}], {'0' if t == 0 else f'v[{d}:{d+3}]'}")
        a("L_Opub:")
        a("v_lshrrev_b32 v4, 1, v1")
        a("v_lshlrev_b32 v4, 14, v4")
        a("v_and_b32 v5, 1, v1")
        a("v_lshl_add_u32 v4, v5, 5, v4")
        a("v_and_b32 v5, 16, v0")
        a("v_add_u32 v4, v4, v5")
        a(f"s_mul_i32 s42, s40, {3*65536}"); a("s_lshl_b32 s46, s46, 6"); a("s_add_u32 s42, s42, s46"); a(f"s_add_u32 s42, s42, {SBUF}")
        a("s_add_u32 s43, s42, 65536"); a("s_add_u32 s44, s42, 131072")
        for k in range(3):
            self.fold(D + 4*k, 8 + 4*k)
        a("s_mov_b64 exec, 0x00ff00ff")
        for k in range(3):
            a(f"buffer_store_dwordx4 v[{D+4*k}:{D+4*k+3}], v4, s[36:39], s{42+k} offen sc1")
        a("s_mov_b64 exec, 1")
        a("v_mov_b32 v5, 1")
        a(f"ds_add_u32 v3, v5 offset:{CNT_O}")
        self.stamp(5)
        self.finish()

if __name__ == "__main__":
    import argparse
    ap = argparse.ArgumentParser()
    ap.add_argument("out")
    ap.add_argument("--ts", action="store_true")
    ap.add_argument("--hmap", default="b16")
    ap.add_argument("--norot", action="store_true")
    ap.add_argument("--nopref", action="store_true")
    x = ap.parse_args()
    open(x.out, "w").write(K(ts=x.ts, hmap=x.hmap, rot=not x.norot, pref=not x.nopref).gen())
```

```python
import sys, re
from asmlib import NAME
src = open(sys.argv[1]).read()
Kf = int(sys.argv[3]); col = int(sys.argv[4]); waves = [int(x) for x in sys.argv[5].split(",")]
m = re.search(r"; @launch (grid=\S+ block=\S+ lds=\d+)", src)
main = f"; @launch kernel={NAME}_kernel {m.group(1)}"
amp = "; @launch kernel=amp_kernel grid=(1,1,1) block=(64,1,1) lds=0"
src = src.replace(m.group(0), main + "\n" + amp)
L = []
a = L.append
a("s_cmp_ge_u32 s2, 1"); a("s_cbranch_scc1 L_amp_end")
a("s_load_dwordx2 s[4:5], s[0:1], 88")
a("s_load_dwordx2 s[20:21], s[0:1], 80")
a("v_lshlrev_b32 v1, 10, v0")
a("s_waitcnt lgkmcnt(0)")
a("s_add_u32 s4, s4, 0x10000000"); a("s_addc_u32 s5, s5, 0"); a("s_mov_b32 s6, 0x100000"); a("s_mov_b32 s7, 0x20000")
r = 8
starts = []; ends = []
for q in range(4):
    a(f"s_mov_b32 s8, {q*65536}")
    a(f"buffer_load_dword v{r}, v1, s[4:7], s8 offen"); starts.append(r); r += 1
    for w in waves:
        a(f"buffer_load_dword v{r}, v1, s[4:7], s8 offen offset:{w*64 + col*8}"); ends.append(r); r += 1
a("s_waitcnt vmcnt(0)")
a(f"v_readfirstlane_b32 s9, v{starts[0]}")
a("s_nop 3")
a("v_mov_b32 v2, 0x7fffffff"); a("v_mov_b32 v3, 0x80000000")
for s in starts:
    a(f"v_subrev_u32 v4, s9, v{s}"); a("v_min_i32 v2, v2, v4")
for e in ends:
    a(f"v_cmp_eq_u32 vcc, 0, v{e}"); a(f"v_subrev_u32 v4, s9, v{e}"); a("s_nop 1"); a("v_cndmask_b32 v4, v4, v3, vcc"); a("v_max_i32 v3, v3, v4")
a("s_mov_b32 s10, 0x7fffffff"); a("s_mov_b32 s11, 0x80000000")
for l in range(64):
    a(f"v_readlane_b32 s12, v2, {l}"); a(f"v_readlane_b32 s13, v3, {l}")
    a("s_nop 0")
    a("s_min_i32 s10, s10, s12"); a("s_max_i32 s11, s11, s13")
a("s_sub_u32 s12, s11, s10")
a("s_min_u32 s12, s12, 10000")
a(f"s_mul_i32 s12, s12, {Kf}")
a("s_memrealtime s[14:15]"); a("s_waitcnt lgkmcnt(0)")
a("L_amp_spin:")
a("s_memrealtime s[16:17]"); a("s_waitcnt lgkmcnt(0)")
a("s_sub_u32 s18, s16, s14"); a("s_cmp_lt_u32 s18, s12"); a("s_cbranch_scc1 L_amp_spin")
a("L_amp_end:")
a("s_endpgm")
body = "\n".join("    " + x if not x.endswith(":") else x for x in L)
src = src.replace('.section .rodata,"a"', '''.globl amp_kernel
.p2align 8
.type amp_kernel,@function
amp_kernel:
''' + body + '''
.section .rodata,"a"
.p2align 6
.amdhsa_kernel amp_kernel
  .amdhsa_next_free_vgpr 64
  .amdhsa_next_free_sgpr 32
  .amdhsa_accum_offset 64
  .amdhsa_group_segment_fixed_size 0
  .amdhsa_kernarg_size 96
  .amdhsa_user_sgpr_count 2
  .amdhsa_user_sgpr_kernarg_segment_ptr 1
  .amdhsa_system_sgpr_workgroup_id_x 1
.end_amdhsa_kernel
''', 1)
open(sys.argv[2], "w").write(src)
```

```python
import sys
from asmlib import *

QBUF = 0
FLAG = 131072
EPOCH = FLAG + 16384
STAT = EPOCH + 256
OBUF = STAT + 4096
FBUF = OBUF + 262144
SBUF = FBUF + 294912
WS_SIZE = SBUF + 36 * 16384
L_K = 0
L_XN = 65536
L_Q = L_XN + 2304
L_OP = L_Q + 512
L_FIN = L_OP + 4096
L_ST = L_FIN + 1024
L_FAC = L_ST + 64
L_FL = L_FAC + 32
FL_XN, FL_CLR, FL_ALL, FL_Q, CNT_ST, CNT_PV, CNT_O, CNT_FIN, FL_TAG = [4 * i for i in range(9)]
LDS_SIZE = L_FL + 64
LOG2E = 0x3fb8aa3b
SCALE = 0x3db504f3
INV576 = 0x3ae38e39
EPS = 0x3727c5ac
DPP = "row_mask:0xf bank_mask:0xf"
NWAVES = 13

class K:
    def __init__(self, dbg=False, ts=False, hmap="b16", rot=True, ldsspin=200000, gspin=20000, pref=True):
        self.a = Asm(); self.ts = ts; self.dbg = dbg; self.hmap = hmap; self.rot = rot
        self.ldsspin = ldsspin; self.gspin = gspin; self.pref = pref
    def stamp(self, i):
        if self.ts or self.dbg:
            self.a(f"s_memrealtime s[{80+2*i}:{81+2*i}]")
    def srd(self, d, p, n):
        a = self.a
        a(f"s_mov_b32 s{d}, s{p}"); a(f"s_mov_b32 s{d+1}, s{p+1}"); a(f"s_mov_b32 s{d+2}, {n}"); a(f"s_mov_b32 s{d+3}, 0x20000")
    def spin_lds(self, off, val, vt, vb):
        a = self.a
        l = a.label("L_sp"); d = a.label("L_spd")
        a(f"s_mov_b32 s78, {self.ldsspin}")
        a(f"{l}:")
        a(f"ds_read_b32 v{vt}, v{vb} offset:{off}")
        a("s_waitcnt lgkmcnt(0)")
        a(f"v_readfirstlane_b32 s79, v{vt}")
        a(f"s_cmp_ge_u32 s79, {val}")
        a(f"s_cbranch_scc1 {d}")
        a("s_sleep 1")
        a("s_sub_u32 s78, s78, 1")
        a(f"s_cbranch_scc0 {l}")
        a(f"{d}:")
    def set_flag(self, off, vt, vb):
        a = self.a
        a(f"v_mov_b32 v{vt}, 1")
        a(f"ds_write_b32 v{vb}, v{vt} offset:{off}")
    def arrive(self, off, vt, vb):
        a = self.a
        a(f"v_mov_b32 v{vt}, 1")
        a("s_mov_b64 exec, 1")
        a(f"ds_add_rtn_u32 v{vt}, v{vb}, v{vt} offset:{off}")
        a("s_mov_b64 exec, -1")
        a("s_waitcnt lgkmcnt(0)")
        a(f"v_readfirstlane_b32 s79, v{vt}")
    def masks(self, m, t0, t1):
        a = self.a
        a(f"v_and_b32 v{t0}, 1, v1")
        a(f"v_lshlrev_b32 v{t0}, 4, v{t0}")
        a(f"v_mov_b32 v{t1}, 0xffff")
        a(f"v_lshlrev_b32 v{t0}, v{t0}, v{t1}")
        a(f"v_lshrrev_b32 v{t1}, 1, v1")
        for j in range(4):
            a(f"v_cmp_eq_u32 vcc, {j}, v{t1}")
            a("s_nop 1")
            a(f"v_cndmask_b32 v{m+j}, 0, v{t0}, vcc")
    def build(self, op, src, m):
        for j in range(4):
            self.a(f"v_and_b32 v{op+j}, v{src}, v{m+j}")
    def fold(self, d, u):
        a = self.a
        for r in range(4):
            a(f"v_permlane32_swap_b32 v{d+r}, v{u+r}")
        for r in range(4):
            a(f"v_add_f32_dpp v{d+r}, v{u+r}, v{d+r} row_ror:8 {DPP}")
    def red8(self, regs, op="add"):
        a = self.a
        for pat in ("quad_perm:[1,0,3,2]", "quad_perm:[2,3,0,1]", "row_half_mirror"):
            if len(regs) < 3: a(f"s_nop {2 - len(regs)}")
            for r in regs:
                a(f"v_{op}_f32_dpp v{r}, v{r}, v{r} {pat} {DPP}")
    def redrows(self, r, t, op="add"):
        a = self.a
        for sw in ("v_permlane16_swap_b32", "v_permlane32_swap_b32"):
            a(f"v_mov_b32 v{t}, v{r}")
            a("s_nop 1")
            a(f"{sw} v{r}, v{t}")
            a("s_nop 1")
            a(f"v_{op}_f32 v{r}, v{r}, v{t}")
    def allred(self, r, t, op="add"):
        a = self.a
        a("s_nop 1")
        self.red8([r], op)
        a("s_nop 1")
        a(f"v_{op}_f32_dpp v{r}, v{r}, v{r} row_mirror {DPP}")
        self.redrows(r, t, op)
    def bfr(self, d, s):
        self.a(f"v_cvt_pk_bf16_f32 v{d}, v{s}, v{s}")
        self.a(f"v_and_b32 v{d}, 0xffff0000, v{d}")
    def bfr2(self, d0, d1, s0, s1):
        a = self.a
        a(f"v_cvt_pk_bf16_f32 v{d1}, v{s0}, v{s1}")
        a(f"v_lshlrev_b32 v{d0}, 16, v{d1}")
        a(f"v_and_b32 v{d1}, 0xffff0000, v{d1}")
    def sentinel_check(self, regs, t, retry, done=None):
        a = self.a
        regs = list(regs)
        first = True
        while regs:
            if first:
                if len(regs) >= 3:
                    a(f"v_max3_u32 v{t}, v{regs[0]}, v{regs[1]}, v{regs[2]}"); regs = regs[3:]
                else:
                    a(f"v_max_u32 v{t}, v{regs[0]}, v{regs[-1]}"); regs = []
                first = False
            elif len(regs) >= 2:
                a(f"v_max3_u32 v{t}, v{t}, v{regs[0]}, v{regs[1]}"); regs = regs[2:]
            else:
                a(f"v_max_u32 v{t}, v{t}, v{regs[0]}"); regs = []
        a(f"v_cmp_eq_u32 vcc, -1, v{t}")
        a("s_sub_u32 s77, s77, 1")
        ok = a.label("L_ok")
        a(f"s_cbranch_scc1 {ok}")
        a(f"s_cbranch_vccnz {retry}")
        a(f"{ok}:")
    def finish(self):
        a = self.a
        if self.ts:
            a("s_branch L_ts")
        else:
            a("s_endpgm")

    def gen(self):
        a = self.a
        if self.ts:
            for i in range(1, 8):
                a(f"s_mov_b64 s[{80+2*i}:{81+2*i}], 0")
        self.stamp(0)
        a("s_cmp_ge_u32 s2, 256")
        a("s_cbranch_scc1 L_end")
        a("s_load_dwordx16 s[4:19], s[0:1], 0")
        a("s_load_dwordx8 s[20:27], s[0:1], 64")
        a("v_lshrrev_b32 v1, 6, v0")
        a("v_and_b32 v0, 63, v0")
        a("v_readfirstlane_b32 s3, v1")
        if self.hmap == "b16":
            a("s_lshr_b32 s28, s2, 4"); a("s_and_b32 s29, s2, 15")
        else:
            a("s_and_b32 s28, s2, 7"); a("s_lshl_b32 s28, s28, 1"); a("s_lshr_b32 s29, s2, 3"); a("s_and_b32 s30, s29, 1")
            a("s_add_u32 s28, s28, s30"); a("s_lshr_b32 s29, s29, 1")
        a("v_and_b32 v1, 7, v0")
        a("v_lshrrev_b32 v2, 3, v0")
        a(f"v_mov_b32 v3, {L_FL}")
        a("s_and_b32 s30, s29, 7")
        a("s_lshl_b32 s31, s28, 3"); a("s_add_u32 s31, s31, s30")
        a("s_cmp_ge_u32 s3, 10"); a("s_cbranch_scc1 L_roleO")
        a("s_cmp_ge_u32 s3, 5"); a("s_cbranch_scc1 L_roleF")
        a("s_cmp_ge_u32 s3, 1"); a("s_cbranch_scc1 L_roleA")
        self.roleQ()
        a("L_roleA:"); self.roleA()
        a("L_roleF:"); self.roleF()
        a("L_roleO:"); self.roleO()
        if self.ts:
            a("L_ts:")
            a("s_waitcnt lgkmcnt(0)")
            a("s_mov_b32 s56, s26"); a("s_mov_b32 s57, s27"); a("s_mov_b32 s58, 0x40000000"); a("s_mov_b32 s59, 0x20000")
            a("s_lshl_b32 s76, s2, 4"); a("s_add_u32 s76, s76, s3"); a("s_lshl_b32 s76, s76, 6"); a("s_add_u32 s76, s76, 0x10000000")
            a("s_mov_b64 exec, 1")
            a("v_mov_b32 v2, 0")
            for i in range(8):
                a(f"v_mov_b32 v4, s{80+2*i}"); a(f"v_mov_b32 v5, s{81+2*i}")
                a(f"buffer_store_dwordx2 v[4:5], v2, s[56:59], s76 offen offset:{i*8}")
                a("s_nop 1")
        a("L_end:")
        a("s_endpgm")
        return wrap(a.text(), 256, 64 * NWAVES, LDS_SIZE, 128, extra_desc="  .amdhsa_float_denorm_mode_32 3\n")

    def roleQ(self):
        a = self.a
        W = 56
        a("s_setprio 3")
        a("v_lshlrev_b32 v4, 4, v0")
        a("v_lshlrev_b32 v5, 2, v0")
        a("v_lshlrev_b32 v6, 13, v2")
        a("v_lshl_add_u32 v6, v1, 4, v6")
        a("s_add_u32 s41, s29, s28"); a("s_and_b32 s41, s41, 3")
        a("s_lshr_b32 s42, s29, 2")
        a(f"s_mul_i32 s40, s42, {144*8192}")
        a("s_lshl_b32 s43, s28, 9"); a("s_add_u32 s40, s40, s43")
        a("s_lshl_b32 s43, s41, 7"); a("s_add_u32 s40, s40, s43")
        a("s_mov_b32 s34, 1152"); a("s_mov_b32 s35, 0x20000")
        a(f"s_mov_b32 s38, {576*4096*2}"); a("s_mov_b32 s39, 0x20000")
        a("v_mov_b32 v14, 0"); a("v_mov_b32 v15, 0"); a("v_mov_b32 v16, 0"); a("v_mov_b32 v17, 0")
        a("ds_write_b128 v3, v[14:17]")
        a("ds_write_b128 v3, v[14:17] offset:16")
        a("s_waitcnt lgkmcnt(0)")
        a("s_mov_b64 s[32:33], s[4:5]")
        a("s_mov_b64 s[36:37], s[10:11]")
        a(f"s_load_dword s60, s[26:27], {EPOCH}")
        a("buffer_load_dwordx4 v[8:11], v4, s[32:35], 0 offen")
        a("buffer_load_dword v12, v5, s[32:35], 0 offen offset:1024")
        for t in range(18):
            a(f"buffer_load_dwordx4 v[{W+4*t}:{W+4*t+3}], v6, s[36:39], s40 offen nt")
            if t < 17: a("s_add_u32 s40, s40, 65536")
        a("s_barrier")
        self.stamp(1)
        self.srd(44, 26, WS_SIZE)
        M = 48
        self.masks(M, 52, 53)
        a("s_waitcnt vmcnt(18)")
        F = 14
        for i in range(5):
            a(f"v_lshlrev_b32 v{F+2*i}, 16, v{8+i}")
            a(f"v_and_b32 v{F+2*i+1}, 0xffff0000, v{8+i}")
        a(f"v_add_f32 v24, v{F}, v{F+1}")
        for i in range(2, 10):
            a(f"v_add_f32 v24, v24, v{F+i}")
        self.allred(24, 25)
        a(f"v_mul_f32 v24, {INV576:#x}, v24")
        a(f"v_sub_f32 v26, v{F}, v24")
        a("v_mul_f32 v25, v26, v26")
        for i in range(1, 8):
            a(f"v_sub_f32 v26, v{F+i}, v24")
            a("v_fmac_f32 v25, v26, v26")
        a("s_mov_b32 exec_hi, 0")
        for i in range(8, 10):
            a(f"v_sub_f32 v26, v{F+i}, v24")
            a("v_fmac_f32 v25, v26, v26")
        a("s_mov_b32 exec_hi, -1")
        self.allred(25, 26)
        a(f"v_mul_f32 v25, {INV576:#x}, v25")
        self.bfr2(24, 25, 24, 25)
        a(f"v_add_f32 v25, {EPS:#x}, v25")
        self.bfr(25, 25)
        a("v_sqrt_f32 v25, v25")
        a("s_nop 0")
        self.bfr(25, 25)
        a("v_rcp_f32 v26, v25")
        for i in range(10):
            a(f"v_sub_f32 v{F+i}, v{F+i}, v24")
        for i in range(0, 10, 2):
            self.bfr2(F+i, F+i+1, F+i, F+i+1)
        for i in range(10):
            a(f"v_mul_f32 v27, v{F+i}, v26")
            a(f"v_fma_f32 v{F+i}, -v27, v25, v{F+i}")
            a(f"v_fma_f32 v27, v{F+i}, v26, v27")
            a(f"v_cvt_pk_bf16_f32 v{28+i}, v27, v27")
        a("v_lshlrev_b32 v4, 5, v0")
        a(f"v_add_u32 v4, {L_XN}, v4")
        a("ds_write_b128 v4, v[28:31]")
        a("ds_write_b128 v4, v[32:35] offset:16")
        a("v_lshlrev_b32 v4, 3, v0")
        a(f"v_add_u32 v4, {L_XN + 2048}, v4")
        a("s_mov_b32 exec_hi, 0")
        a("ds_write_b64 v4, v[36:37]")
        a("s_mov_b32 exec_hi, -1")
        self.set_flag(FL_XN, 5, 3)
        a("s_mul_i32 s43, s42, 576"); a(f"s_add_u32 s43, s43, {L_XN}")
        a("v_lshl_add_u32 v4, v2, 2, s43")
        MU = 8
        for t in range(0, 18, 2):
            a(f"ds_read2_b32 v[{MU+t}:{MU+t+1}], v4 offset0:{8*t} offset1:{8*t+8}")
        a("s_waitcnt lgkmcnt(0)")
        self.stamp(2)
        OP = [28, 32]; D = 36; U = 40
        self.build(OP[0], MU, M)
        for t in range(18):
            if t < 17: self.build(OP[(t+1) & 1], MU + t + 1, M)
            else: a("s_nop 0")
            a(f"s_waitcnt vmcnt({17-t})")
            o = OP[t & 1]
            a(f"v_mfma_f32_16x16x32_bf16 v[{D}:{D+3}], v[{o}:{o+3}], v[{W+4*t}:{W+4*t+3}], {'0' if t == 0 else f'v[{D}:{D+3}]'}")
        a("v_lshlrev_b32 v4, 6, v1")
        a("v_and_b32 v5, 16, v0")
        a("v_lshl_add_u32 v4, v5, 1, v4")
        a("s_lshl_b32 s40, s28, 13"); a("s_lshl_b32 s43, s42, 11"); a("s_add_u32 s43, s43, s40")
        a("s_lshl_b32 s41, s41, 9"); a("s_add_u32 s43, s43, s41")
        a("s_add_u32 s60, s60, 1")
        a("s_add_u32 s41, s40, 4096")
        for i in range(4):
            a(f"v_mov_b32 v{9+2*i}, s60")
        for r in range(4):
            a(f"v_permlane32_swap_b32 v{D+r}, v{U+r}")
        for r in range(4):
            a(f"v_add_f32_dpp v{8+2*r}, v{U+r}, v{D+r} row_ror:8 {DPP}")
        a("s_mov_b64 exec, 0x00ff00ff")
        a("buffer_store_dwordx4 v[8:11], v4, s[44:47], s43 offen sc1")
        a("buffer_store_dwordx4 v[12:15], v4, s[44:47], s43 offen offset:16 sc1")
        a("s_mov_b64 exec, -1")
        self.stamp(3)
        a("v_lshlrev_b32 v4, 4, v0")
        a(f"s_mov_b32 s77, {self.gspin}")
        a("L_qpoll:")
        G = 16
        for r in range(8):
            a(f"buffer_load_dwordx4 v[{G+4*r}:{G+3+4*r}], v4, s[44:47], s{40 + r // 4} offen offset:{1024*(r % 4)} sc1")
        a("s_waitcnt vmcnt(0)")
        if self.ts:
            a(f"s_cmp_eq_u32 s77, {self.gspin}"); a("s_cbranch_scc0 L_qp2"); self.stamp(4); a("L_qp2:")
        a(f"v_xor_b32 v5, s60, v{G+1}")
        for i in range(1, 16):
            a(f"v_bitop3_b32 v5, v5, v{G+1+2*i}, s60 bitop3:0xf6")
        a("v_cmp_ne_u32 vcc, 0, v5")
        a("s_sub_u32 s77, s77, 1")
        a("s_cbranch_scc1 L_qok")
        a("s_cbranch_vccnz L_qpoll")
        a("L_qok:")
        for hf in range(2):
            for e in range(2):
                b = G + 4 * hf + 2 * e
                a(f"v_add_f32 v{b}, v{b}, v{b+8}")
                a(f"v_add_f32 v{b+16}, v{b+16}, v{b+24}")
        for hf in range(2):
            for e in range(2):
                b = G + 4 * hf + 2 * e
                a(f"v_add_f32 v{b}, v{b}, v{b+16}")
        a(f"v_cvt_pk_bf16_f32 v12, v{G}, v{G+2}")
        a(f"v_cvt_pk_bf16_f32 v13, v{G+4}, v{G+6}")
        a("v_lshlrev_b32 v4, 2, v0")
        a(f"v_add_u32 v4, {L_Q}, v4")
        a("ds_write2_b32 v4, v12, v13 offset0:0 offset1:64")
        self.set_flag(FL_Q, 5, 3)
        self.stamp(5)
        self.finish()

    def roleA(self):
        a = self.a
        V = 64; QF = 16; KF = 32; S = 48
        a("s_setprio 2")
        a("s_sub_u32 s40, s3, 1")
        a("v_lshrrev_b32 v4, 4, v0")
        a("v_and_b32 v5, 15, v0")
        a("v_xor_b32 v6, v4, v5")
        a("v_lshlrev_b32 v6, 4, v6")
        a("v_lshl_add_u32 v8, v4, 8, v6")
        for t in range(1, 4):
            a(f"v_xor_b32 v{8+t}, {t<<6}, v8")
        a("v_lshlrev_b32 v7, 4, v5")
        a("v_lshl_add_u32 v7, v4, 10, v7")
        a("s_lshl_b32 s41, s28, 24"); a("s_lshl_b32 s42, s29, 16"); a("s_add_u32 s41, s41, s42")
        a("s_lshl_b32 s42, s40, 14"); a("s_add_u32 s41, s41, s42"); a(f"s_add_u32 s41, s41, {61440*256}")
        for T in range(4):
            if self.rot:
                a(f"s_add_u32 s43, s29, s40"); a(f"s_add_u32 s43, s43, {T}"); a("s_and_b32 s43, s43, 3"); a("s_lshl_b32 s43, s43, 12")
                a(f"s_add_u32 s{44+T}, s41, s43")
            else:
                a(f"s_add_u32 s{44+T}, s41, {T*4096}")
        a("s_mov_b32 s34, 0x10000000"); a("s_mov_b32 s35, 0x20000"); a("s_mov_b32 s38, 0x10000000"); a("s_mov_b32 s39, 0x20000")
        a("s_waitcnt lgkmcnt(0)")
        a("s_mov_b64 s[32:33], s[6:7]")
        a("s_mov_b64 s[36:37], s[8:9]")
        a("s_mov_b32 m0, s42")
        a("s_barrier")
        for T in range(4):
            for t in range(4):
                a(f"buffer_load_dwordx4 v{8+t}, s[32:35], s{44+T} offen offset:{1024*t} nt lds")
            if T < 3:
                a("s_add_u32 m0, m0, 4096")
                a("s_nop 0")
        self.stamp(1)
        for T in range(4):
            for r in range(4):
                i = 4 * T + r
                a(f"buffer_load_dwordx4 v[{V+4*i}:{V+4*i+3}], v7, s[36:39], s{44+T} offen offset:{256*r} nt")
        self.stamp(2)
        self.srd(48, 26, WS_SIZE)
        a("v_lshl_add_u32 v8, v5, 8, v6")
        a("v_add_u32 v8, s42, v8")
        for c in range(1, 4):
            a(f"v_xor_b32 v{8+c}, {c<<6}, v8")
        a("v_lshrrev_b32 v12, 3, v5")
        a("v_lshlrev_b32 v13, 8, v12")
        a("v_lshl_add_u32 v13, v4, 4, v13")
        a(f"v_add_u32 v13, {L_Q}, v13")
        self.spin_lds(FL_CLR, 1, 14, 3)
        self.spin_lds(FL_Q, 1, 14, 3)
        self.stamp(3)
        for c in range(4):
            a(f"ds_read_b128 v[{QF+4*c}:{QF+4*c+3}], v13 offset:{64*c}")
        a("s_waitcnt vmcnt(16)")
        for c in range(4):
            a(f"ds_read_b128 v[{KF+4*c}:{KF+4*c+3}], v{8+c}")
        for T in range(4):
            for c in range(4):
                a(f"s_waitcnt lgkmcnt({3 if T < 3 else 3 - c})")
                a(f"v_mfma_f32_16x16x32_bf16 v[{S+4*T}:{S+4*T+3}], v[{KF+4*c}:{KF+4*c+3}], v[{QF+4*c}:{QF+4*c+3}], {'0' if c == 0 else f'v[{S+4*T}:{S+4*T+3}]'}")
                if T < 3:
                    a(f"ds_read_b128 v[{KF+4*c}:{KF+4*c+3}], v{8+c} offset:{4096*(T+1)}")
        M = 16
        self.masks(M, 20, 21)
        a(f"s_mov_b32 s43, {SCALE:#x}")
        for i in range(0, 16, 2):
            self.bfr2(S+i, S+i+1, S+i, S+i+1)
        for i in range(16):
            a(f"v_mul_f32 v{S+i}, s43, v{S+i}")
        for i in range(0, 16, 2):
            self.bfr2(S+i, S+i+1, S+i, S+i+1)
        a(f"v_max3_f32 v22, v{S}, v{S+1}, v{S+2}")
        for i in range(3, 15, 2):
            a(f"v_max3_f32 v22, v22, v{S+i}, v{S+i+1}")
        a(f"v_max_f32 v22, v22, v{S+15}")
        self.redrows(22, 24, "max")
        a(f"s_mov_b32 s43, {LOG2E:#x}")
        for i in range(16):
            a(f"v_sub_f32 v{S+i}, v{S+i}, v22")
        for i in range(16):
            a(f"v_mul_f32 v{S+i}, s43, v{S+i}")
        for i in range(16):
            a(f"v_exp_f32 v{S+i}, v{S+i}")
        a(f"v_add_f32 v23, v{S}, v{S+1}")
        for i in range(2, 16):
            a(f"v_add_f32 v23, v23, v{S+i}")
        self.redrows(23, 24, "add")
        for i in range(16):
            a(f"v_cvt_pk_bf16_f32 v{S+i}, v{S+i}, v{S+i}")
        a("v_lshlrev_b32 v13, 3, v12")
        a(f"v_add_u32 v13, {L_ST}, v13")
        a("s_lshl_b32 s52, s40, 4")
        a("v_add_u32 v14, s52, v13")
        a("s_mov_b64 exec, 0x101")
        a("ds_write_b64 v14, v[22:23]")
        a("s_mov_b64 exec, -1")
        self.arrive(CNT_ST, 9, 3)
        a("s_lshl_b32 s53, s28, 4"); a("s_add_u32 s53, s53, s29")
        a("s_cmp_lg_u32 s79, 3")
        a("s_cbranch_scc1 L_nostat")
        for w in range(4):
            a(f"ds_read_b64 v[{24+2*w}:{25+2*w}], v13 offset:{16*w}")
        a("s_waitcnt lgkmcnt(0)")
        a("v_max3_f32 v22, v24, v26, v28")
        a("v_max_f32 v22, v22, v30")
        for w in range(4):
            a(f"v_sub_f32 v{32+w}, v{24+2*w}, v22")
        for w in range(4):
            a(f"v_mul_f32 v{32+w}, s43, v{32+w}")
        for w in range(4):
            a(f"v_exp_f32 v{32+w}, v{32+w}")
        a("v_mul_f32 v23, v32, v25")
        for w in range(1, 4):
            a(f"v_fmac_f32 v23, v{32+w}, v{25+2*w}")
        a("v_lshlrev_b32 v14, 4, v12")
        a(f"v_add_u32 v14, {L_FAC}, v14")
        a("v_lshlrev_b32 v15, 3, v12")
        a("s_lshl_b32 s54, s53, 4"); a(f"s_add_u32 s54, s54, {STAT}")
        a("s_mov_b64 exec, 0x101")
        a("ds_write_b128 v14, v[32:35]")
        a("buffer_store_dwordx2 v[22:23], v15, s[48:51], s54 offen sc1")
        a("s_mov_b64 exec, -1")
        a("L_nostat:")
        self.stamp(4)
        OP = [36, 40]; D = 44
        self.build(OP[0], S, M)
        for i in range(16):
            if i < 15: self.build(OP[(i+1) & 1], S + i + 1, M)
            else: a("s_nop 0")
            a(f"s_waitcnt vmcnt({15-i})")
            o = OP[i & 1]
            a(f"v_mfma_f32_16x16x32_bf16 v[{D}:{D+3}], v[{o}:{o+3}], v[{V+4*i}:{V+4*i+3}], {'0' if i == 0 else f'v[{D}:{D+3}]'}")
        a("v_lshlrev_b32 v13, 4, v0")
        a(f"v_add_u32 v13, {L_OP}, v13")
        a("s_lshl_b32 s52, s40, 10")
        a("v_add_u32 v14, s52, v13")
        a("v_lshrrev_b32 v15, 5, v0")
        a("v_lshlrev_b32 v12, 9, v15")
        a("v_lshlrev_b32 v15, 4, v15")
        a(f"v_add_u32 v15, {L_FAC}, v15")
        a("s_nop 0")
        a(f"ds_write_b128 v14, v[{D}:{D+3}]")
        self.arrive(CNT_PV, 9, 3)
        a("s_cmp_lg_u32 s79, 3")
        a("s_cbranch_scc1 L_nopub")
        a("ds_read_b128 v[16:19], v15")
        for w in range(4):
            a(f"ds_read_b128 v[{20+4*w}:{23+4*w}], v13 offset:{1024*w}")
        a("v_lshl_add_u32 v12, v5, 5, v12")
        a("v_and_b32 v14, 16, v0")
        a("v_add_u32 v12, v12, v14")
        a("s_lshl_b32 s54, s53, 10"); a(f"s_add_u32 s54, s54, {OBUF}")
        a("s_waitcnt lgkmcnt(3)")
        for r in range(4):
            a(f"v_mul_f32 v{36+r}, v16, v{20+r}")
        for w in range(1, 4):
            a(f"s_waitcnt lgkmcnt({3-w})")
            for r in range(4):
                a(f"v_fmac_f32 v{36+r}, v{16+w}, v{20+4*w+r}")
        a("buffer_store_dwordx4 v[36:39], v12, s[48:51], s54 offen sc1")
        a("L_nopub:")
        self.stamp(5)
        a("s_cmp_lt_u32 s29, 8")
        a("s_cbranch_scc1 L_Adone")
        if self.hmap == "b16":
            a("s_mov_b32 s55, s31")
        else:
            a("s_lshl_b32 s55, s30, 4"); a("s_add_u32 s55, s55, s28")
        a("s_cmp_ge_u32 s55, 36")
        a("s_cbranch_scc1 L_Adone")
        self.srd(32, 4, 1152)
        self.srd(36, 22, 1152)
        a("v_lshlrev_b32 v9, 1, v5")
        a("s_lshl_b32 s56, s55, 5")
        a("buffer_load_ushort v10, v9, s[32:35], s56 offen")
        a("v_lshlrev_b32 v8, 4, v0")
        a("s_lshl_b32 s57, s55, 14"); a("s_lshl_b32 s58, s40, 12"); a("s_add_u32 s57, s57, s58"); a(f"s_add_u32 s57, s57, {SBUF}")
        a("v_and_b32 v11, 3, v0")
        a("v_lshlrev_b32 v11, 4, v11")
        a("v_lshl_add_u32 v11, v4, 6, v11")
        a("s_lshl_b32 s58, s40, 8"); a(f"s_add_u32 s58, s58, {L_FIN}")
        a("v_add_u32 v11, s58, v11")
        a("v_and_b32 v12, 1, v4")
        a("v_lshlrev_b32 v12, 9, v12")
        a("v_lshl_add_u32 v12, v5, 2, v12")
        a(f"v_add_u32 v12, {L_FIN}, v12")
        self.spin_lds(CNT_O, 3, 14, 3)
        a(f"s_mov_b32 s77, {self.gspin}")
        a("L_fpoll:")
        for r in range(4):
            a(f"buffer_load_dwordx4 v[{16+4*r}:{19+4*r}], v8, s[48:51], s57 offen offset:{1024*r} sc1")
        a("s_waitcnt vmcnt(0)")
        self.sentinel_check(range(16, 32), 14, "L_fpoll")
        self.stamp(6)
        for i in range(4):
            a(f"v_add_f32 v{16+i}, v{16+i}, v{20+i}")
            a(f"v_add_f32 v{24+i}, v{24+i}, v{28+i}")
        for i in range(4):
            a(f"v_add_f32 v{16+i}, v{16+i}, v{24+i}")
        for rot in (4, 8):
            for i in range(4):
                a(f"v_add_f32_dpp v{16+i}, v{16+i}, v{16+i} row_ror:{rot} {DPP}")
        a("s_mov_b32 exec_lo, 0x000f000f"); a("s_mov_b32 exec_hi, 0x000f000f")
        a("ds_write_b128 v11, v[16:19]")
        a("s_mov_b64 exec, -1")
        self.arrive(CNT_FIN, 14, 3)
        a("s_cmp_lg_u32 s79, 3")
        a("s_cbranch_scc1 L_Adone")
        for k in range(4):
            a(f"ds_read2_b32 v[{16+2*k}:{17+2*k}], v12 offset0:{32*k} offset1:{32*k+16}")
        a("v_lshlrev_b32 v10, 16, v10")
        a("s_waitcnt lgkmcnt(0)")
        for k in range(4):
            a(f"v_add_f32 v{16+2*k}, v{16+2*k}, v{17+2*k}")
        a("v_add_f32 v16, v16, v18"); a("v_add_f32 v20, v20, v22"); a("v_add_f32 v16, v16, v20")
        self.bfr(16, 16)
        a("v_mov_b32 v17, v16")
        a("s_nop 1")
        a("v_permlane16_swap_b32 v16, v17")
        a("s_nop 1")
        a(f"v_mul_f32 v18, {LOG2E | 0x80000000:#x}, v17")
        a("v_exp_f32 v18, v18")
        a("s_nop 0")
        a("v_add_f32 v18, 1.0, v18")
        a("v_rcp_f32 v18, v18")
        a("s_nop 0")
        a("v_mul_f32 v18, v17, v18")
        self.bfr(18, 18)
        a("v_mul_f32 v18, v16, v18")
        self.bfr(18, 18)
        a("v_add_f32 v18, v10, v18")
        a("v_cvt_pk_bf16_f32 v18, v18, v18")
        a("s_mov_b64 exec, 0xffff")
        a("buffer_store_short v18, v9, s[36:39], s56 offen")
        self.stamp(7)
        if self.dbg:
            a("s_cmp_ge_u32 s55, 2"); a("s_cbranch_scc1 L_nodbg")
            a("s_waitcnt lgkmcnt(0)")
            self.srd(60, 24, 256)
            a("s_lshl_b32 s64, s55, 5")
            a("s_mov_b64 exec, 1")
            for i in range(8):
                if i: a(f"s_sub_u32 s65, s{80+2*i}, s80")
                else: a("s_mov_b32 s65, s80")
                a("v_mov_b32 v20, s65")
                a(f"buffer_store_dword v20, v9, s[60:63], s64 offen offset:{4*i}")
            a("L_nodbg:")
        a("s_cmp_lg_u32 s55, 0")
        a("s_cbranch_scc1 L_Adone")
        a(f"ds_read_b32 v19, v3 offset:{FL_TAG}")
        a(f"s_mov_b32 s56, {EPOCH}")
        a("s_mov_b64 exec, 1")
        a("s_waitcnt lgkmcnt(0)")
        a("buffer_store_dword v19, v9, s[48:51], s56 offen sc1")
        a("L_Adone:")
        self.finish()

    def roleF(self):
        a = self.a
        W = 32
        a("s_setprio 1")
        a("s_sub_u32 s40, s3, 5")
        if self.pref:
            lp = a.label("L_nopf")
            a("s_cmp_lg_u32 s40, 0"); a(f"s_cbranch_scc1 {lp}")
            a("s_getpc_b64 s[48:49]")
            a("L_pc:")
            a(f"s_sub_u32 s48, s48, L_pc-{NAME}_kernel"); a("s_subb_u32 s49, s49, 0")
            a("v_lshlrev_b32 v4, 7, v0")
            a(f"v_min_u32 v4, L_end-{NAME}_kernel, v4")
            a("global_load_dword v100, v4, s[48:49]")
            a("v_add_u32 v4, 8192, v4")
            a(f"v_min_u32 v4, L_end-{NAME}_kernel, v4")
            a("global_load_dword v101, v4, s[48:49]")
            a(f"{lp}:")
        a("s_lshr_b32 s41, s29, 3"); a("s_mul_i32 s41, s41, 5"); a("s_add_u32 s41, s41, s40")
        a("s_lshr_b32 s42, s28, 1"); a("s_mul_i32 s42, s42, 9"); a("s_add_u32 s42, s42, s41")
        a("s_mov_b32 s43, s30")
        a(f"s_mul_i32 s44, s43, {72*9216}"); a("s_lshl_b32 s45, s42, 7"); a("s_add_u32 s44, s44, s45")
        a("v_mul_u32_u24 v6, 9216, v2")
        a("v_lshl_add_u32 v6, v1, 4, v6")
        a(f"s_mov_b32 s34, {576*4608*2}"); a("s_mov_b32 s35, 0x20000")
        a("s_bitcmp1_b32 s28, 0")
        a("s_waitcnt lgkmcnt(0)")
        a("s_cselect_b64 s[32:33], s[18:19], s[16:17]")
        a("s_barrier")
        a("s_cmp_ge_u32 s41, 9")
        a("s_cbranch_scc1 L_Fdone")
        for t in range(9):
            a(f"buffer_load_dwordx4 v[{W+4*t}:{W+4*t+3}], v6, s[32:35], s44 offen nt")
            if t < 8: a(f"s_add_u32 s44, s44, {8*9216}")
        self.stamp(1)
        a("s_setprio 3")
        self.srd(36, 26, WS_SIZE)
        M = 28
        self.masks(M, 4, 5)
        self.spin_lds(FL_XN, 1, 5, 3)
        a("s_mul_i32 s45, s43, 288"); a(f"s_add_u32 s45, s45, {L_XN}")
        a("v_lshl_add_u32 v4, v2, 2, s45")
        MU = 8
        for t in range(0, 8, 2):
            a(f"ds_read2_b32 v[{MU+t}:{MU+t+1}], v4 offset0:{8*t} offset1:{8*t+8}")
        a(f"ds_read_b32 v{MU+8}, v4 offset:256")
        a("v_lshlrev_b32 v4, 5, v1")
        a("v_and_b32 v5, 16, v0")
        a("v_add_u32 v4, v4, v5")
        a("s_and_b32 s45, s28, 1"); a("s_lshl_b32 s45, s45, 3"); a("s_add_u32 s45, s45, s43"); a("s_mul_i32 s45, s45, 18432")
        a("s_lshl_b32 s46, s42, 8"); a("s_add_u32 s45, s45, s46"); a(f"s_add_u32 s45, s45, {FBUF}")
        self.spin_lds(FL_CLR, 1, 5, 3)
        OP = [20, 24]; D = 68; U = 72
        self.build(OP[0], MU, M)
        for t in range(9):
            if t < 8: self.build(OP[(t+1) & 1], MU + t + 1, M)
            else: a("s_nop 0")
            a(f"s_waitcnt vmcnt({8-t})")
            o = OP[t & 1]
            a(f"v_mfma_f32_16x16x32_bf16 v[{D}:{D+3}], v[{o}:{o+3}], v[{W+4*t}:{W+4*t+3}], {'0' if t == 0 else f'v[{D}:{D+3}]'}")
        self.stamp(2)
        a("s_nop 7")
        self.fold(D, U)
        a("s_mov_b64 exec, 0x00ff00ff")
        a(f"buffer_store_dwordx4 v[{D}:{D+3}], v4, s[36:39], s45 offen sc1")
        self.stamp(3)
        a("L_Fdone:")
        self.finish()

    def roleO(self):
        a = self.a
        W = 64
        a("s_sub_u32 s40, s3, 10")
        a(f"s_mov_b32 s38, {WS_SIZE}"); a("s_mov_b32 s39, 0x20000")
        a("s_cmp_lg_u32 s40, 0")
        a("s_cbranch_scc1 L_Onoclr")
        a("s_setprio 3")
        a("v_lshlrev_b32 v4, 4, v0")
        for i in range(4): a(f"v_mov_b32 v{8+i}, -1")
        a("v_lshrrev_b32 v5, 2, v0"); a("v_lshlrev_b32 v5, 14, v5")
        a("v_and_b32 v6, 3, v0"); a("v_lshl_add_u32 v5, v6, 4, v5")
        a("s_lshl_b32 s47, s28, 4"); a("s_add_u32 s47, s47, s29")
        a("s_lshl_b32 s41, s47, 10"); a(f"s_add_u32 s41, s41, {OBUF}")
        a("s_lshl_b32 s42, s47, 4"); a(f"s_add_u32 s42, s42, {STAT}")
        a("s_and_b32 s43, s31, 15"); a("s_mul_i32 s43, s43, 18432")
        a("s_lshr_b32 s44, s28, 1"); a("s_mul_i32 s44, s44, 2304"); a("s_add_u32 s43, s43, s44")
        a("s_lshr_b32 s45, s29, 3"); a("s_mul_i32 s44, s45, 1280"); a("s_add_u32 s43, s43, s44"); a(f"s_add_u32 s43, s43, {FBUF}")
        a("s_lshl_b32 s44, s45, 7"); a("s_add_u32 s44, s44, s31"); a("s_lshl_b32 s44, s44, 6"); a(f"s_add_u32 s44, s44, {SBUF}")
        a(f"s_add_u32 s48, s44, {16*16384}"); a(f"s_add_u32 s49, s44, {32*16384}")
        a("s_waitcnt lgkmcnt(0)")
        a("s_mov_b64 s[36:37], s[26:27]")
        a(f"s_load_dword s60, s[26:27], {EPOCH}")
        a("s_barrier")
        a("buffer_store_dwordx4 v[8:11], v4, s[36:39], s41 offen sc1")
        a("buffer_store_dwordx4 v[8:11], v4, s[36:39], s43 offen sc1")
        a("buffer_store_dwordx4 v[8:11], v5, s[36:39], s44 offen sc1")
        a("buffer_store_dwordx4 v[8:11], v5, s[36:39], s48 offen sc1")
        a("s_mov_b64 exec, 0xffff")
        a("buffer_store_dwordx4 v[8:11], v5, s[36:39], s49 offen sc1")
        a("s_cmp_lg_u32 s45, 0")
        a("s_cbranch_scc1 L_noclr5")
        a("buffer_store_dwordx4 v[8:11], v4, s[36:39], s43 offen offset:1024 sc1")
        a("L_noclr5:")
        a("s_mov_b64 exec, 1")
        a("buffer_store_dwordx4 v[8:11], v4, s[36:39], s42 offen sc1")
        a("s_lshl_b32 s41, s47, 6"); a(f"s_add_u32 s41, s41, {FLAG}")
        a("s_waitcnt lgkmcnt(0)")
        a("s_add_u32 s60, s60, 1")
        a("v_mov_b32 v5, s60")
        a(f"ds_write_b32 v3, v5 offset:{FL_TAG}")
        a("s_waitcnt vmcnt(0)")
        a("buffer_store_dword v5, v4, s[36:39], s41 offen sc1")
        a("s_mov_b64 exec, -1")
        self.set_flag(FL_CLR, 6, 3)
        self.stamp(1)
        a("v_lshlrev_b32 v4, 6, v0")
        a("v_and_b32 v5, 0x7ff, v4")
        a("s_lshr_b32 s41, s28, 1"); a("s_lshl_b32 s41, s41, 11"); a(f"s_add_u32 s41, s41, {FLAG}")
        if self.hmap == "b16":
            a("s_mov_b32 s42, s31")
        else:
            a("s_lshl_b32 s42, s30, 4"); a("s_add_u32 s42, s42, s28")
        a("s_cmp_lt_u32 s29, 8"); a("s_cselect_b32 s42, 99, s42")
        self.spin_lds(FL_Q, 1, 6, 3)
        a(f"s_mov_b32 s77, {self.gspin}")
        a("s_cmp_lt_u32 s42, 36")
        a("s_cbranch_scc1 L_flall")
        a("L_flpoll:")
        a("buffer_load_dword v6, v5, s[36:39], s41 offen sc1")
        a("s_waitcnt vmcnt(0)")
        a("v_cmp_ne_u32 vcc, s60, v6")
        a("s_sub_u32 s77, s77, 1")
        a("s_cbranch_scc1 L_flok")
        a("s_cbranch_vccnz L_flpoll")
        a("s_branch L_flok")
        a("L_flall:")
        a(f"s_mov_b32 s41, {FLAG}"); a(f"s_mov_b32 s42, {FLAG+4096}"); a(f"s_mov_b32 s43, {FLAG+8192}"); a(f"s_mov_b32 s44, {FLAG+12288}")
        a("L_flpoll2:")
        for i in range(4):
            a(f"buffer_load_dword v{8+i}, v4, s[36:39], s{41+i} offen sc1")
        a("s_waitcnt vmcnt(0)")
        a("v_xor_b32 v6, s60, v8")
        for i in range(1, 4):
            a(f"v_bitop3_b32 v6, v6, v{8+i}, s60 bitop3:0xf6")
        a("v_cmp_ne_u32 vcc, 0, v6")
        a("s_sub_u32 s77, s77, 1")
        a("s_cbranch_scc1 L_flok")
        a("s_cbranch_vccnz L_flpoll2")
        a("L_flok:")
        self.set_flag(FL_ALL, 6, 3)
        self.stamp(2)
        a("s_setprio 0")
        a("s_branch L_Ogo")
        a("L_Onoclr:")
        a("s_waitcnt lgkmcnt(0)")
        a("s_mov_b64 s[36:37], s[26:27]")
        a("s_barrier")
        a("L_Ogo:")
        a("s_cmp_ge_u32 s29, 8")
        a("s_cselect_b64 s[32:33], s[20:21], s[12:13]")
        a("s_cselect_b32 s41, 36, 32")
        a("s_mul_i32 s41, s41, 1152")
        a("s_lshl_b32 s34, s41, 7")
        a("s_mov_b32 s35, 0x20000")
        a("s_mul_i32 s41, s41, s31"); a("s_mul_i32 s42, s40, 384"); a("s_add_u32 s41, s41, s42")
        a("v_mul_u32_u24 v6, 4608, v2")
        a("v_lshl_add_u32 v6, v1, 4, v6")
        for t in range(4):
            for k in range(3):
                r = W + 4 * (3 * t + k)
                a(f"buffer_load_dwordx4 v[{r}:{r+3}], v6, s[32:35], s41 offen offset:{t*1152 + k*128} nt")
        M = 60
        A0 = 40
        D = 28
        a("s_cmp_ge_u32 s29, 8")
        a("s_cbranch_scc1 L_Ow2")
        self.stamp(3)
        a("s_setprio 3")
        self.masks(M, 4, 5)
        a("v_lshlrev_b32 v4, 4, v1")
        a("s_lshl_b32 s42, s28, 8"); a("s_lshr_b32 s43, s30, 2"); a("s_lshl_b32 s43, s43, 3"); a("s_add_u32 s42, s42, s43"); a(f"s_add_u32 s42, s42, {STAT}")
        a("v_lshlrev_b32 v5, 10, v1")
        a("v_lshl_add_u32 v5, v2, 4, v5")
        a("s_lshl_b32 s43, s28, 14"); a("s_lshl_b32 s44, s30, 7"); a("s_add_u32 s43, s43, s44"); a(f"s_add_u32 s43, s43, {OBUF}")
        a("s_add_u32 s44, s43, 8192")
        a(f"s_mov_b32 s45, {LOG2E:#x}")
        a("s_mov_b32 s46, s31")
        self.spin_lds(FL_ALL, 1, 7, 3)
        a(f"s_mov_b32 s77, {self.gspin}")
        a("L_opoll:")
        a("buffer_load_dwordx2 v[8:9], v4, s[36:39], s42 offen sc1")
        a("buffer_load_dwordx2 v[10:11], v4, s[36:39], s42 offen offset:128 sc1")
        a("buffer_load_dwordx4 v[12:15], v5, s[36:39], s43 offen sc1")
        a("buffer_load_dwordx4 v[16:19], v5, s[36:39], s44 offen sc1")
        a("s_waitcnt vmcnt(0)")
        self.sentinel_check(range(8, 20), 7, "L_opoll")
        self.stamp(4)
        a("v_max_f32 v20, v8, v10")
        a("s_nop 0")
        self.red8([20], "max")
        a("v_sub_f32 v8, v8, v20"); a("v_sub_f32 v10, v10, v20")
        a("v_mul_f32 v8, s45, v8"); a("v_mul_f32 v10, s45, v10")
        a("v_exp_f32 v8, v8"); a("v_exp_f32 v10, v10")
        a("s_nop 0")
        a("v_mul_f32 v20, v8, v9"); a("v_fmac_f32 v20, v10, v11")
        for i in range(4):
            a(f"v_mul_f32 v{12+i}, v8, v{12+i}")
        for i in range(4):
            a(f"v_fmac_f32 v{12+i}, v10, v{16+i}")
        self.red8([20, 12, 13, 14, 15])
        a("v_rcp_f32 v20, v20")
        a("s_nop 0")
        for i in range(4):
            a(f"v_mul_f32 v{12+i}, v20, v{12+i}")
        for i in range(4):
            a(f"v_cvt_pk_bf16_f32 v{12+i}, v{12+i}, v{12+i}")
        for t in range(4):
            self.build(A0 + 4*t, 12 + t, M)
        a("s_nop 1")
        for t in range(4):
            for k in range(3):
                r = W + 4 * (3 * t + k); d = D + 4 * k
                a(f"v_mfma_f32_16x16x32_bf16 v[{d}:{d+3}], v[{A0+4*t}:{A0+4*t+3}], v[{r}:{r+3}], {'0' if t == 0 else f'v[{d}:{d+3}]'}")
        a("s_branch L_Opub")
        a("L_Ow2:")
        a("v_lshrrev_b32 v4, 4, v0")
        a("v_mul_u32_u24 v7, 1152, v4")
        a("v_lshl_add_u32 v7, v1, 4, v7")
        a("v_and_b32 v5, 8, v0")
        a("v_lshl_add_u32 v7, v5, 27, v7")
        a(f"s_add_u32 s42, s41, {32*1152}")
        for k in range(3):
            r = W + 4 * (12 + k)
            a(f"buffer_load_dwordx4 v[{r}:{r+3}], v7, s[32:35], s42 offen offset:{k*128} nt")
        self.stamp(3)
        a("s_setprio 3")
        a("v_mul_u32_u24 v6, 18432, v1")
        a("v_lshl_add_u32 v7, v4, 2, v6")
        a("v_mul_u32_u24 v5, 18432, v5")
        a("v_add_u32 v7, v7, v5")
        a("v_lshl_add_u32 v6, v2, 4, v6")
        self.masks(M, 4, 5)
        a("s_mul_i32 s42, s31, 144"); a(f"s_add_u32 s42, s42, {FBUF}")
        a(f"s_add_u32 s43, s42, {8*18432}")
        a(f"s_mov_b32 s45, {LOG2E | 0x80000000:#x}")
        a("s_add_u32 s46, s31, 128")
        self.spin_lds(FL_ALL, 1, 5, 3)
        a(f"s_mov_b32 s77, {self.gspin}")
        a("L_hpoll:")
        a("buffer_load_dwordx4 v[8:11], v6, s[36:39], s42 offen sc1")
        a("buffer_load_dwordx4 v[14:17], v6, s[36:39], s43 offen sc1")
        a("buffer_load_dword v12, v7, s[36:39], s42 offen offset:128 sc1")
        a("s_waitcnt vmcnt(0)")
        self.sentinel_check([8, 9, 10, 11, 12, 14, 15, 16, 17], 5, "L_hpoll")
        self.stamp(4)
        self.red8([8, 9, 10, 11, 12, 14, 15, 16, 17])
        a(f"v_mov_b32_dpp v18, v12 row_ror:8 {DPP}")
        for i in range(5):
            self.bfr2(8 + i, 14 + i, 8 + i, 14 + i)
        for i in range(5):
            a(f"v_mul_f32 v{20+i}, s45, v{8+i}")
        for i in range(5):
            a(f"v_exp_f32 v{20+i}, v{20+i}")
        for i in range(5):
            a(f"v_add_f32 v{20+i}, 1.0, v{20+i}")
        for i in range(5):
            a(f"v_rcp_f32 v{20+i}, v{20+i}")
        for i in range(5):
            a(f"v_mul_f32 v{8+i}, v{8+i}, v{20+i}")
        for i in range(5):
            self.bfr(8 + i, 8 + i)
        for i in range(5):
            a(f"v_mul_f32 v{8+i}, v{8+i}, v{14+i}")
        for i in range(5):
            a(f"v_cvt_pk_bf16_f32 v{8+i}, v{8+i}, v{8+i}")
        for t in range(5):
            self.build(A0 + 4*t, 8 + t, M)
        a("s_nop 1")
        for t in range(5):
            for k in range(3):
                r = W + 4 * (3 * t + k); d = D + 4 * k
                a(f"v_mfma_f32_16x16x32_bf16 v[{d}:{d+3}], v[{A0+4*t}:{A0+4*t+3}], v[{r}:{r+3}], {'0' if t == 0 else f'v[{d}:{d+3}]'}")
        a("L_Opub:")
        a("v_lshrrev_b32 v4, 1, v1")
        a("v_lshlrev_b32 v4, 14, v4")
        a("v_and_b32 v5, 1, v1")
        a("v_lshl_add_u32 v4, v5, 5, v4")
        a("v_and_b32 v5, 16, v0")
        a("v_add_u32 v4, v4, v5")
        a(f"s_mul_i32 s42, s40, {3*65536}"); a("s_lshl_b32 s46, s46, 6"); a("s_add_u32 s42, s42, s46"); a(f"s_add_u32 s42, s42, {SBUF}")
        a("s_add_u32 s43, s42, 65536"); a("s_add_u32 s44, s42, 131072")
        for k in range(3):
            self.fold(D + 4*k, 8 + 4*k)
        a("s_mov_b64 exec, 0x00ff00ff")
        for k in range(3):
            a(f"buffer_store_dwordx4 v[{D+4*k}:{D+4*k+3}], v4, s[36:39], s{42+k} offen sc1")
        a("s_mov_b64 exec, 1")
        a("v_mov_b32 v5, 1")
        a(f"ds_add_u32 v3, v5 offset:{CNT_O}")
        self.stamp(5)
        self.finish()

if __name__ == "__main__":
    import argparse
    ap = argparse.ArgumentParser()
    ap.add_argument("out")
    ap.add_argument("--ts", action="store_true")
    ap.add_argument("--dbg", action="store_true")
    ap.add_argument("--hmap", default="b16")
    ap.add_argument("--norot", action="store_true")
    ap.add_argument("--nopref", action="store_true")
    x = ap.parse_args()
    open(x.out, "w").write(K(dbg=x.dbg, ts=x.ts, hmap=x.hmap, rot=not x.norot, pref=not x.nopref).gen())
```
